```python
import torch

def _softmax(x, axis=-1):
    return torch.softmax(x, dim=axis)
def _gelu(x):
    return torch.nn.functional.gelu(x, approximate="tanh")
def _silu(x):
    return torch.nn.functional.silu(x)
def _sigmoid(x):
    return torch.sigmoid(x)
def _layernorm(x, axis=-1, eps=1e-5):
    m = x.mean(dim=axis, keepdim=True)
    v = x.var(dim=axis, keepdim=True, unbiased=False)
    return (x - m) / torch.sqrt(v + eps)
def _scatter_add(tgt, idx, src, axis=0):
    return tgt.clone().index_add_(axis, idx, src)
def _segment_sum(src, seg, n):
    out = torch.zeros((n,) + src.shape[1:], dtype=src.dtype)
    return out.index_add_(0, seg, src)
def _pad(x, pw):
    flat = tuple(v for pair in reversed(pw) for v in pair)
    return torch.nn.functional.pad(x, flat)

kernel_name = 'concat_heads__sliding_block__mha_block__prompt'

def setup_inputs():

    _w = (lambda a: (lambda t: t.to(torch.bfloat16) if t.is_floating_point() else t)(torch.as_tensor(a)))
    def _A_setup():
        B, S, D = 1, 2048, 1024
        return {
            "x": _w((lambda *s: torch.randn(*s, dtype=torch.bfloat16) * 0.2)(B, S, D)),
            "wqkv": _w((lambda *s: torch.randn(*s, dtype=torch.bfloat16) * 0.8)(D, 3 * D)),
            "wo": _w((lambda *s: torch.randn(*s, dtype=torch.bfloat16) * 0.8)(D, D)),
        }
    _A_in = _A_setup()

    def _B_setup():
        B, S, D, H = 1, 2048, 1024, 32
        return {
            "x": _w((lambda *s: torch.randn(*s, dtype=torch.bfloat16) * 0.2)(B, S, D)),
            "wqkv": _w((lambda *s: torch.randn(*s, dtype=torch.bfloat16) * 0.8)(D, 3 * D)),
            "wo": _w((lambda *s: torch.randn(*s, dtype=torch.bfloat16) * 0.8)(D, D)),
        }
    _B_in = _B_setup()

    return {
        "A_x": _A_in["x"],
        "A_wqkv": _A_in["wqkv"],
        "A_wo": _A_in["wo"],
        "B_x": _B_in["x"],
        "B_wqkv": _B_in["wqkv"],
        "B_wo": _B_in["wo"],
    }

def reference(A_x, A_wqkv, A_wo, B_x, B_wqkv, B_wo):
    def _A_ref(x, wqkv, wo):
        B, S, D = x.shape
        H = 32; Dh = D // H; W = 256
        qkv = (lambda x, *d: x.permute(*d))((x @ wqkv).reshape(B, S, 3, H, Dh), 2, 0, 3, 1, 4)
        q, k, v = qkv[0], qkv[1], qkv[2]
        scores = torch.einsum("bhqd,bhkd->bhqk", q, k) * (Dh ** -0.5)
        idx = torch.arange(S)
        mask = (idx[:, None] - idx[None, :] >= 0) & (idx[:, None] - idx[None, :] < W)
        scores = torch.where(mask[None, None], scores, -1e9)
        p = _softmax(scores, axis=-1)
        o = torch.einsum("bhqk,bhkd->bhqd", p, v)
        return (lambda x, *d: x.permute(*d))(o, 0, 2, 1, 3).reshape(B, S, D) @ wo

    def _B_ref(x, wqkv, wo):
        B, S, D = x.shape
        H = 32
        Dh = D // H
        qkv = (lambda x, *d: x.permute(*d))((x @ wqkv).reshape(B, S, 3, H, Dh), 2, 0, 3, 1, 4)
        q, k, v = qkv[0], qkv[1], qkv[2]
        scores = torch.einsum("bhqd,bhkd->bhqk", q, k) * (Dh ** -0.5)
        p = _softmax(scores, axis=-1)
        o = torch.einsum("bhqk,bhkd->bhqd", p, v)
        return (lambda x, *d: x.permute(*d))(o, 0, 2, 1, 3).reshape(B, S, D) @ wo

    a = _A_ref(A_x, A_wqkv, A_wo)
    b = _B_ref(B_x, B_wqkv, B_wo)
    return torch.concatenate([a, b], axis=-1)
```

```python
import sys, math, struct

NAME = "concat_heads__sliding_block__mha_block__prompt"
OUT = "cdna_kernels/%s.s" % NAME

def f32(x): return struct.unpack("<I", struct.pack("<f", x))[0]

class Asm:
    def __init__(self): self.l = []
    def __call__(self, s):
        for line in s.strip("\n").split("\n"):
            line = line.strip()
            if not line: continue
            self.l.append(line if line.endswith(":") or line.startswith(".") else "    " + line)
    def text(self): return "\n".join(self.l) + "\n"

def vr(a, n): return "v[%d:%d]" % (a, a + n - 1)
def sr(a, n): return "s[%d:%d]" % (a, a + n - 1)

MB = 1 << 20
WS_Q, WS_KV, WS_O, WS_SIZE = 0, 8 * MB, 24 * MB, 32 * MB

def srd(a, s, lo, hi, size):
    a(f"""
    s_mov_b32 s{s}, {lo}
    s_mov_b32 s{s+1}, {hi}
    s_mov_b32 s{s+2}, {size:#x}
    s_mov_b32 s{s+3}, 0x00020000
    """)

def kstart(a, name):
    a(f"""
    .globl {name}
    .p2align 8
    .type {name},@function
    {name}:
    """)

def kdesc(name, nfv, nsgpr=102):
    acc = (nfv + 3) // 4 * 4
    return f"""
.p2align 6
.amdhsa_kernel {name}
  .amdhsa_next_free_vgpr {nfv}
  .amdhsa_next_free_sgpr {nsgpr}
  .amdhsa_accum_offset {acc}
  .amdhsa_group_segment_fixed_size 0
  .amdhsa_kernarg_size 72
  .amdhsa_user_sgpr_count 2
  .amdhsa_user_sgpr_kernarg_segment_ptr 1
  .amdhsa_system_sgpr_workgroup_id_x 1
.end_amdhsa_kernel
"""

def mfma(d, A, B, C=None):
    c = vr(d, 16) if C is None else (C if isinstance(C, str) else vr(C, 16))
    return f"v_mfma_f32_32x32x16_bf16 {vr(d,16)}, {vr(A,4)}, {vr(B,4)}, {c}"

G1_XB = [0, 32768, 65536]
G1_WB = [98304, 122880]
G1_LDS = 147456

def gen_qkv(a):
    K = "qkv_kernel"
    kstart(a, K)
    a("""
    s_cmp_ge_u32 s2, 256
    s_cbranch_scc1 L_q_end
    s_load_dwordx4 s[20:23], s[0:1], 0
    s_load_dwordx2 s[24:25], s[0:1], 24
    s_load_dwordx2 s[26:27], s[0:1], 32
    s_load_dwordx2 s[28:29], s[0:1], 64
    v_lshrrev_b32 v1, 6, v0
    v_and_b32 v0, 63, v0
    s_and_b32 s30, s2, 7          ; xcd
    s_lshr_b32 s31, s2, 3         ; idx
    v_readfirstlane_b32 s16, v1
    s_lshr_b32 s32, s30, 2        ; part
    s_bfe_u32 s33, s30, 0x10001   ; (xcd>>1)&1
    s_lshl_b32 s33, s33, 2
    s_and_b32 s34, s31, 3
    s_add_u32 s33, s33, s34       ; mt
    s_and_b32 s34, s30, 1
    s_lshl_b32 s34, s34, 3
    s_lshr_b32 s35, s31, 2
    s_add_u32 s34, s34, s35       ; nt
    s_waitcnt lgkmcnt(0)
    s_cmp_eq_u32 s32, 0
    s_cselect_b32 s20, s20, s24
    s_cselect_b32 s21, s21, s25
    s_cselect_b32 s22, s22, s26
    s_cselect_b32 s23, s23, s27
    """)
    srd(a, 4, "s20", "s21", 2048 * 1024 * 2)
    srd(a, 8, "s22", "s23", 1024 * 3072 * 2)
    srd(a, 12, "s28", "s29", WS_SIZE)
    a("""
    s_cmp_ge_u32 s16, 4
    s_cbranch_scc1 L_q_loader
    """)
    a("""
    s_lshr_b32 s36, s16, 1        ; wm
    s_and_b32 s37, s16, 1         ; wh
    v_and_b32 v6, 31, v0          ; t
    v_lshrrev_b32 v7, 5, v0       ; h
    v_bfe_u32 v5, v0, 1, 3        ; f = (t>>1)&7
    v_lshlrev_b32 v6, 7, v6       ; t*128
    s_lshl_b32 s38, s36, 14
    v_add_u32 v6, s38, v6         ; + wm*16384
    """)
    for ks in range(4):
        a(f"""
        v_or_b32 v{1+ks}, {2*ks}, v7
        v_xor_b32 v{1+ks}, v{1+ks}, v5
        v_lshl_add_u32 v{1+ks}, v{1+ks}, 4, v6
        """)
    a(f"""
    v_bfe_u32 v6, v0, 2, 2        ; i>>2
    v_lshl_add_u32 v6, v7, 3, v6  ; 8h + (i>>2)
    v_lshlrev_b32 v6, 7, v6
    v_bfe_u32 v5, v0, 3, 1
    v_xor_b32 v5, s37, v5
    v_lshl_add_u32 v6, v5, 6, v6
    v_bfe_u32 v5, v0, 4, 1
    v_lshl_add_u32 v6, v5, 5, v6
    v_and_b32 v5, 3, v0
    v_lshl_add_u32 v5, v5, 3, v6
    v_add_u32 v5, {G1_WB[0]}, v5
    """)
    for r in range(64, 256): a(f"v_mov_b32 v{r}, 0")
    F = [8, 36]
    def reads(fs, ks):
        r = []
        for tt in range(4):
            r.append(f"ds_read_b128 {vr(F[fs]+4*tt,4)}, v{1+ks} offset:{tt*4096}")
        for sec in range(3):
            for half in range(2):
                r.append(f"ds_read_b64_tr_b16 {vr(F[fs]+16+4*sec+2*half,2)}, v5 offset:{sec*8192+ks*2048+half*512}")
        return [r[0], r[4], r[5], r[6], r[7], r[8], r[9], r[1], r[2], r[3]]
    def mfmas(fs):
        m = []
        for tt in range(4):
            for sec in range(3):
                d = 64 + (tt * 3 + sec) * 16
                x, w = F[fs] + 4 * tt, F[fs] + 16 + 4 * sec
                m.append(mfma(d, w, x) if sec < 2 else mfma(d, x, w))
        return m
    a("""
    s_mov_b32 s40, 0
    s_mov_b32 s41, 0              ; x buffer index (s%3)
    s_mov_b32 s42, 24576          ; w delta
    s_mov_b32 s49, 0x8000
    s_barrier
    """)
    for r in reads(0, 0): a(r)
    a(".p2align 6")
    a("L_q_loop:")
    for ks in range(4):
        cur, nxt = ks & 1, (ks + 1) & 1
        rd = reads(nxt, (ks + 1) & 3)
        mm = mfmas(cur)
        a("s_waitcnt lgkmcnt(0)")
        if ks == 3:
            a("s_barrier")
            a(mm[0])
            a("""
            s_add_u32 s41, s41, 1
            s_cmp_eq_u32 s41, 3
            s_cselect_b32 s43, 0xffff0000, s49
            s_cselect_b32 s41, 0, s41
            v_add_u32 v1, s43, v1
            v_add_u32 v5, s42, v5
            """)
            a(rd[0]); a(rd[1])
            a(mm[1])
            a("""
            v_add_u32 v2, s43, v2
            v_add_u32 v3, s43, v3
            v_add_u32 v4, s43, v4
            s_sub_u32 s42, 0, s42
            """)
            a(rd[2]); a(rd[3])
            i0 = 2
        else:
            i0 = 0
        for i in range(i0, 12):
            a(mm[i])
            if i < 5:
                a(rd[2 * i]); a(rd[2 * i + 1])
            if ks == 3 and i == 10:
                a("s_add_u32 s40, s40, 1\ns_cmp_lt_u32 s40, 16")
    a("s_cbranch_scc1 L_q_loop")
    c = math.log2(math.e) / math.sqrt(32.0)
    a(f"""
    s_waitcnt lgkmcnt(0)
    s_lshl_b32 s44, s34, 1
    s_add_u32 s44, s44, s37       ; head
    s_lshl_b32 s44, s44, 6
    s_lshl_b32 s45, s33, 3
    s_add_u32 s44, s44, s45
    s_lshl_b32 s45, s36, 2
    s_add_u32 s44, s44, s45
    s_lshl_b32 s46, s44, 11
    s_lshl_b32 s45, s32, 22
    s_add_u32 s46, s46, s45       ; Q base
    s_lshl_b32 s47, s44, 12
    s_lshl_b32 s45, s32, 23
    s_add_u32 s47, s47, s45
    s_add_u32 s47, s47, {WS_KV}
    s_mov_b32 s48, {f32(c):#x}
    v_lshlrev_b32 v1, 4, v0       ; lane*16
    v_and_b32 v2, 0x33, v0
    v_bfe_u32 v3, v0, 2, 1
    v_lshl_or_b32 v2, v3, 3, v2
    v_bfe_u32 v3, v0, 3, 1
    v_lshl_or_b32 v2, v3, 2, v2
    v_lshlrev_b32 v2, 4, v2       ; swap23(lane)*16
    """)
    for tt in range(4):
        for sec in range(3):
            d = 64 + (tt * 3 + sec) * 16
            if sec == 0:
                for r in range(16): a(f"v_mul_f32 v{d+r}, s48, v{d+r}")
            for r in range(8): a(f"v_cvt_pk_bf16_f32 v{d+r}, v{d+2*r}, v{d+2*r+1}")
            if sec == 0:
                a(f"buffer_store_dwordx4 {vr(d,4)}, v1, s[12:15], s46 offen")
                a(f"buffer_store_dwordx4 {vr(d+4,4)}, v1, s[12:15], s46 offen offset:1024")
            elif sec == 1:
                a(f"buffer_store_dwordx4 {vr(d,4)}, v2, s[12:15], s47 offen")
                a(f"buffer_store_dwordx4 {vr(d+4,4)}, v2, s[12:15], s47 offen offset:1024")
            else:
                a(f"buffer_store_dwordx4 {vr(d,4)}, v1, s[12:15], s47 offen offset:2048")
                a(f"buffer_store_dwordx4 {vr(d+4,4)}, v1, s[12:15], s47 offen offset:3072")
        a("s_add_u32 s46, s46, 2048\ns_add_u32 s47, s47, 4096")
    a("s_endpgm")
    a("L_q_loader:")
    a("""
    s_sub_u32 s36, s16, 4         ; lw
    v_lshrrev_b32 v1, 3, v0       ; l>>3
    v_and_b32 v2, 7, v0           ; l&7
    v_lshrrev_b32 v3, 4, v0       ; l>>4
    s_lshl_b32 s37, s33, 8
    s_lshl_b32 s38, s36, 6
    s_add_u32 s37, s37, s38
    v_add_u32 v4, s37, v1
    v_lshlrev_b32 v4, 11, v4      ; row*2048
    v_xor_b32 v5, v2, v3
    v_xor_b32 v6, 4, v5
    v_lshl_add_u32 v5, v5, 4, v4
    v_lshl_add_u32 v6, v6, 4, v4
    """)
    for n in range(8):
        a(f"v_add_u32 v{8+n}, {n*16384}, v{5 + (n & 1)}")
    a("""
    s_lshl_b32 s38, s36, 4
    v_add_u32 v4, s38, v1
    s_mov_b32 s39, 6144
    v_mul_lo_u32 v4, v4, s39
    v_and_b32 v3, 1, v3
    v_lshlrev_b32 v3, 2, v3
    v_xor_b32 v5, v2, v3
    v_lshl_add_u32 v4, v5, 4, v4
    s_lshl_b32 s38, s34, 7        ; nt*128
    v_add_u32 v4, s38, v4
    """)
    for sec in range(3):
        for jj in range(2):
            a(f"v_add_u32 v{16+sec*2+jj}, {sec*2048 + jj*8*6144}, v4")
    a("""
    s_lshl_b32 s40, s36, 13
    s_lshl_b32 s41, s36, 11
    """)
    def ldx(s):
        a(f"s_mov_b32 s42, {s*128}")
        for n in range(8):
            a(f"s_add_u32 m0, s40, {G1_XB[s%3] + n*1024}\ns_nop 0")
            a(f"buffer_load_dwordx4 v{8+n}, s[4:7], s42 offen lds")
    def ldw(s):
        a(f"s_mov_b32 s43, {s*64*6144}")
        for sec in range(3):
            for jj in range(2):
                a(f"s_add_u32 m0, s41, {G1_WB[s%2] + sec*8192 + jj*1024}\ns_nop 0")
                a(f"buffer_load_dwordx4 v{16+sec*2+jj}, s[8:11], s43 offen lds")
    ldx(0); ldw(0); ldx(1); ldw(1); ldx(2)
    a("s_waitcnt vmcnt(22)\ns_barrier")
    a("s_waitcnt vmcnt(8)\ns_barrier")
    for s in range(1, 15):
        ldw(s + 1)
        if s + 2 < 16:
            ldx(s + 2)
            a("s_waitcnt vmcnt(8)\ns_barrier")
        else:
            a("s_waitcnt vmcnt(0)\ns_barrier")
    a("L_q_end:\ns_endpgm")
    return kdesc(K, 256)

AT_LDS = 131072
R_OFF = 64.0
T_HI = 2.0 ** 48

def upper_mask(r):
    m = 0
    for l in range(64):
        key = (r & 7) + 8 * (l >> 5) + 16 * (r >> 3)
        if key > (l & 31): m |= 1 << l
    return m

def gen_attn(a):
    K = "attn_kernel"
    kstart(a, K)
    S = [16, 32]; O = 48; NM = 64; L = 80; QF = 84; KF = 92; VA = 100; VB = 104; AS = 108; IDX = 112
    VK, VKN, VLANE, T0, T1, T2 = 1, 2, 3, 4, 5, 6
    VDMA = 7; QA = 116; MK = 124
    NINF = 0xff800000
    def sm32(d, A, B): return f"v_smfmac_f32_32x32x32_bf16 {vr(d,16)}, {vr(A,4)}, {vr(B,8)}, v{IDX}"
    def sm16(d, A, B): return f"v_smfmac_f32_16x16x64_bf16 {vr(d,4)}, {vr(A,4)}, {vr(B,8)}, v{IDX}"
    a(f"""
    s_cmp_ge_u32 s2, 256
    s_cbranch_scc1 L_a_end
    s_load_dwordx2 s[28:29], s[0:1], 64
    v_lshrrev_b32 v1, 6, v0
    v_and_b32 v0, 63, v0
    s_and_b32 s30, s2, 7
    s_lshr_b32 s31, s2, 3
    v_readfirstlane_b32 s16, v1   ; wave
    s_lshl_b32 s32, s30, 2
    s_and_b32 s33, s31, 3
    s_add_u32 s32, s32, s33       ; head
    s_lshr_b32 s33, s31, 2        ; qb
    s_lshl_b32 s34, s33, 3
    s_add_u32 s34, s34, s16       ; q tile
    v_lshlrev_b32 v{VLANE}, 4, v0
    s_lshl_b32 s35, s16, 12       ; w*4096
    v_add_u32 v{VDMA}, s35, v{VLANE}
    s_lshl_b32 s36, s32, 18       ; head*64*4096
    s_add_u32 s37, s36, {WS_KV + 8*MB}
    s_lshl_b32 s38, s33, 15
    s_add_u32 s38, s38, s36
    s_add_u32 s38, s38, {WS_KV - 32768}
    s_lshl_b32 s39, s32, 6
    s_add_u32 s39, s39, s34
    s_lshl_b32 s39, s39, 11       ; Q offset (A)
    s_add_u32 s40, s39, {4*MB}    ; Q offset (B)
    s_lshl_b32 s41, s34, 5
    s_add_u32 s41, s41, s32
    s_lshl_b32 s41, s41, 11
    s_add_u32 s41, s41, {WS_O}    ; O offset (A)
    s_add_u32 s42, s41, {4*MB}    ; O offset (B)
    s_waitcnt lgkmcnt(0)
    """)
    srd(a, 12, "s28", "s29", WS_SIZE)
    a(f"""
    buffer_load_dwordx4 {vr(QF,4)}, v{VLANE}, s[12:15], s40 offen
    buffer_load_dwordx4 {vr(QF+4,4)}, v{VLANE}, s[12:15], s40 offen offset:1024
    """)
    def dma(sptr, slot_expr):
        a(f"s_mov_b32 m0, {slot_expr}\ns_nop 0")
        for i in range(4):
            a(f"buffer_load_dwordx4 v{VDMA}, s[12:15], {sptr} offen offset:{i*1024} lds")
    a("s_mov_b32 s43, s35\ns_mov_b32 s44, s37")
    for c in range(3):
        dma("s44", "s43")
        a("s_add_u32 s44, s44, 32768\ns_add_u32 s43, s43, 32768")
    a(f"""
    buffer_load_dwordx4 {vr(QA,4)}, v{VLANE}, s[12:15], s39 offen
    buffer_load_dwordx4 {vr(QA+4,4)}, v{VLANE}, s[12:15], s39 offen offset:1024
    """)
    a(f"""
    v_mov_b32 v{IDX}, 0xdddddddd
    v_and_b32 v{T0}, 7, v0
    v_mov_b32 v{T1}, 0x3f803f80
    v_cmp_eq_u32 vcc, 0, v{T0}
    s_nop 1
    v_cndmask_b32 v{AS}, 0, v{T1}, vcc
    v_cndmask_b32 v{AS+1}, 0, v{T1}, vcc
    v_cmp_eq_u32 vcc, 4, v{T0}
    s_nop 1
    v_cndmask_b32 v{AS+2}, 0, v{T1}, vcc
    v_cndmask_b32 v{AS+3}, 0, v{T1}, vcc
    v_mov_b32 v{VK}, v{VLANE}
    v_add_u32 v{VKN}, 32768, v{VLANE}
    s_mov_b32 s46, {f32(T_HI):#x}
    s_mov_b32 s47, {f32(R_OFF):#x}
    """)
    for r in range(16):
        m = upper_mask(r)
        a(f"s_mov_b32 s{64+2*r}, {m & 0xffffffff:#x}\ns_mov_b32 s{65+2*r}, {m >> 32:#x}")

    def zero_acc():
        for r in range(16): a(f"v_mov_b32 v{O+r}, 0")
        for r in range(4): a(f"v_mov_b32 v{L+r}, 0")

    def first_tile(q, addr, off0, off1, cinit):
        a(f"""
        ds_read_b128 {vr(KF,4)}, v{addr} offset:{off0}
        ds_read_b128 {vr(KF+4,4)}, v{addr} offset:{off0+1024}
        s_waitcnt lgkmcnt(0)
        {mfma(S[0], KF, q, cinit)}
        {mfma(S[0], KF+4, q+4)}
        ds_read_b128 {vr(KF,4)}, v{addr} offset:{off1}
        ds_read_b128 {vr(KF+4,4)}, v{addr} offset:{off1+1024}
        ds_read_b128 {vr(VA,4)}, v{addr} offset:{off0+2048}
        s_nop 12
        """)
        s = S[0]
        a(f"v_max3_f32 v{T0}, v{s}, v{s+1}, v{s+2}")
        for r in range(3, 15, 2): a(f"v_max3_f32 v{T0}, v{T0}, v{s+r}, v{s+r+1}")
        a(f"""
        v_max_f32 v{T0}, v{T0}, v{s+15}
        v_mov_b32 v{T1}, v{T0}
        s_nop 1
        v_permlane32_swap_b32 v{T0}, v{T1}
        s_nop 1
        v_max_f32 v{T0}, v{T0}, v{T1}
        v_add_f32 v{T0}, s47, v{T0}
        v_sub_f32 v{NM}, 0, v{T0}
        """)
        for r in range(1, 16): a(f"v_mov_b32 v{NM+r}, v{NM}")
        for r in range(16): a(f"v_add_f32 v{s+r}, v{NM}, v{s+r}")

    def tile_iter(i, q, rdVb, rdK, rdVa, first=False, cblk=NM, pre_qk=None, mid=None, do_qk=True, chk=False):
        s, sp = S[i & 1], S[(i + 1) & 1]
        e = [f"v_exp_f32 v{s+r}, v{s+r}" for r in range(16)]
        a(e[0]); a(e[1])
        if not first:
            a("s_waitcnt lgkmcnt(3)")
            a(sm32(O, VB, sp + 8))
        a(rdVb)
        a(e[2]); a(e[3]); a(e[4])
        if not first: a(sm16(L, AS, sp + 8))
        a(e[5])
        if mid: mid()
        if pre_qk: pre_qk()
        a("s_waitcnt lgkmcnt(3)")
        if do_qk: a(mfma(sp, KF, q, cblk))
        a(rdK[0])
        a(e[6]); a(e[7]); a(e[8])
        a("s_waitcnt lgkmcnt(3)")
        if do_qk: a(mfma(sp, KF + 4, q + 4))
        a(rdK[1])
        a(e[9]); a(e[10]); a(e[11])
        a("s_waitcnt lgkmcnt(3)")
        a(sm32(O, VA, s))
        a(rdVa)
        a(e[12]); a(e[13])
        if chk: a(f"v_cmp_lt_f32 vcc, s46, v{L}")
        a(e[14])
        a(sm16(L, AS, s))
        a(e[15])

    rescue_sites = []
    def rescue_hook(i, tag):
        a(f"s_cbranch_vccnz L_resc_{tag}")
        a(f"L_back_{tag}:")
        rescue_sites.append((i & 1, tag))

    def finish(i_last, ooff, tag, slow_args):
        sp = S[i_last & 1]
        a(f"""
        s_waitcnt lgkmcnt(0)
        s_nop 1
        {sm32(O, VB, sp + 8)}
        {sm16(L, AS, sp + 8)}
        s_nop 12
        v_mul_f32 v{T0}, 0, v{L}
        """)
        for r in range(16): a(f"v_fma_f32 v{T0}, v{O+r}, 0, v{T0}")
        a(f"""
        v_rcp_f32 v{T1}, v{L}
        v_cmp_u_f32 vcc, v{T0}, v{T0}
        s_nop 4
        s_cbranch_vccz L_ok_{tag}
        {slow_args}
        s_call_b64 s[52:53], L_slow
        v_rcp_f32 v{T1}, v{L}
        s_nop 0
        L_ok_{tag}:
        """)
        for r in range(16): a(f"v_mul_f32 v{O+r}, v{T1}, v{O+r}")
        for r in range(8): a(f"v_cvt_pk_bf16_f32 v{MK+r}, v{O+2*r}, v{O+2*r+1}")
        a(f"""
        buffer_store_dwordx4 {vr(MK,4)}, v{VLANE}, s[12:15], {ooff} offen
        buffer_store_dwordx4 {vr(MK+4,4)}, v{VLANE}, s[12:15], {ooff} offen offset:1024
        """)

    zero_acc()
    a("s_waitcnt vmcnt(10)\ns_barrier")
    first_tile(QF, VK, 0, 4096, "0")
    for r in range(8): a(f"v_mov_b32 v{S[1]+8+r}, 0")
    for r in range(4): a(f"v_mov_b32 v{VB+r}, 0")
    a("s_mov_b32 s45, 0")
    a(".p2align 6")
    a("L_a_loop:")
    for i in range(8):
        def rd(reg, tile, sub):
            if tile < 8: return f"ds_read_b128 {vr(reg,4)}, v{VK} offset:{tile*4096+sub*1024}"
            return f"ds_read_b128 {vr(reg,4)}, v{VKN} offset:{(tile-8)*4096+sub*1024}"
        mid = None
        if i == 6:
            def mid():
                a("s_waitcnt vmcnt(4)\ns_barrier")
                a("""
                s_cmp_eq_u32 s45, 5
                s_cselect_b32 s44, s38, s44
                s_cmp_ge_u32 s45, 7
                s_cbranch_scc1 L_a_nodma
                """)
                dma("s44", "s43")
                a("""
                s_add_u32 s44, s44, 32768
                s_add_u32 s43, s43, 32768
                s_and_b32 s43, s43, 0x1ffff
                L_a_nodma:
                """)
        tile_iter(i, QF, rd(VB, i, 3), [rd(KF, i + 2, 0), rd(KF + 4, i + 2, 1)], rd(VA, i + 1, 2), mid=mid, chk=(i % 4 == 3))
        if i % 4 == 3: rescue_hook(i, f"b{i}")
    a(f"""
    v_mov_b32 v{VK}, v{VKN}
    v_add_u32 v{VKN}, 32768, v{VKN}
    s_add_u32 s45, s45, 1
    v_and_b32 v{VKN}, 0x1ffff, v{VKN}
    s_cmp_lt_u32 s45, 8
    s_cbranch_scc1 L_a_loop
    """)
    finish(7, "s42", "b", f"s_mov_b32 s54, s37\ns_mov_b32 s55, 64\ns_mov_b32 s56, 0\ns_mov_b32 s57, s40")
    zero_acc()
    a(f"""
    v_mov_b32 v{T2}, {NINF:#x}
    v_add_u32 v{VK}, s35, v{VLANE}      ; + w*4096
    s_add_u32 s48, s16, 1
    s_cmp_eq_u32 s33, 0
    s_cselect_b32 s48, s48, 99
    """)
    for r in range(16): a(f"v_cndmask_b32 v{MK+r}, 0, v{T2}, {sr(64+2*r,2)}")
    a("s_waitcnt vmcnt(2)\ns_barrier")
    first_tile(QA, VK, 8 * 4096, 7 * 4096, MK)
    for i in range(9):
        def rd(reg, t, sub):
            t = min(t, 8)
            return f"ds_read_b128 {vr(reg,4)}, v{VK} offset:{(8-t)*4096+sub*1024}"
        def pre(i=i):
            if i + 1 <= 8:
                a(f"s_cmp_lg_u32 s48, {i+1}\ns_cbranch_scc1 L_a_val{i}")
                for r in range(16): a(f"v_mov_b32 v{NM+r}, v{T2}")
                a(f"L_a_val{i}:")
            if i == 7:
                for r in range(16): a(f"v_cndmask_b32 v{MK+r}, v{T2}, v{NM+r}, {sr(64+2*r,2)}")
            a("s_nop 0")
        tile_iter(i, QA, rd(VB, i, 3), [rd(KF, i + 2, 0), rd(KF + 4, i + 2, 1)], rd(VA, i + 1, 2), first=(i == 0),
                  cblk=(MK if i == 7 else NM), pre_qk=pre, do_qk=(i < 8), chk=(i in (2, 5)))
        if i in (2, 5): rescue_hook(i, f"a{i}")
    finish(8, "s41", "a", f"""
    s_add_u32 s54, s38, s35
    s_mov_b32 s55, 9
    s_mov_b32 s56, 1
    s_cmp_eq_u32 s33, 0
    s_cbranch_scc0 L_a_slowargs
    s_add_u32 s54, s38, 32768
    s_mov_b32 s55, s48
    s_mov_b32 s56, 2
    L_a_slowargs:
    s_mov_b32 s57, s39""")
    a("L_a_end:\ns_endpgm")
    for par, tag in rescue_sites:
        s, sp = S[par], S[par ^ 1]
        a(f"""
        L_resc_{tag}:
        s_nop 15
        v_frexp_exp_i32_f32 v{T0}, v{L}
        v_add_u32 v{T0}, {int(R_OFF)}, v{T0}     ; delta
        v_cvt_f32_i32 v{T1}, v{T0}
        v_sub_u32 v{T0}, 0, v{T0}
        """)
        for r in range(16): a(f"v_ldexp_f32 v{O+r}, v{O+r}, v{T0}")
        a(f"v_ldexp_f32 v{L}, v{L}, v{T0}")
        for r in range(8, 16): a(f"v_ldexp_f32 v{s+r}, v{s+r}, v{T0}")
        for r in range(16): a(f"v_sub_f32 v{sp+r}, v{sp+r}, v{T1}")
        for r in range(16): a(f"v_sub_f32 v{NM+r}, v{NM+r}, v{T1}")
        a(f"s_nop 1\ns_branch L_back_{tag}")
    s = S[0]; M = S[1]; AL = S[1] + 1
    a(f"""
    L_slow:
    buffer_load_dwordx4 {vr(QF,4)}, v{VLANE}, s[12:15], s57 offen
    buffer_load_dwordx4 {vr(QF+4,4)}, v{VLANE}, s[12:15], s57 offen offset:1024
    v_mov_b32 v{T2}, {NINF:#x}
    v_mov_b32 v{M}, 0xff7fffff
    s_mov_b32 s58, 0
    """)
    zero_acc()
    a(f"""
    L_slow_loop:
    buffer_load_dwordx4 {vr(KF,4)}, v{VLANE}, s[12:15], s54 offen
    buffer_load_dwordx4 {vr(KF+4,4)}, v{VLANE}, s[12:15], s54 offen offset:1024
    buffer_load_dwordx4 {vr(VA,4)}, v{VLANE}, s[12:15], s54 offen offset:2048
    buffer_load_dwordx4 {vr(VB,4)}, v{VLANE}, s[12:15], s54 offen offset:3072
    s_waitcnt vmcnt(0)
    {mfma(s, KF, QF, "0")}
    {mfma(s, KF+4, QF+4)}
    s_nop 15
    s_cmp_eq_u32 s56, 1
    s_cbranch_scc0 L_slow_nm1
    s_cmp_eq_u32 s58, 0
    s_cbranch_scc0 L_slow_nm1
    """)
    for r in range(16): a(f"v_cndmask_b32 v{s+r}, v{T2}, v{s+r}, {sr(64+2*r,2)}")
    a(f"""
    L_slow_nm1:
    s_add_u32 s58, s58, 1
    s_cmp_eq_u32 s56, 0
    s_cbranch_scc1 L_slow_nm2
    s_cmp_eq_u32 s58, s55
    s_cbranch_scc0 L_slow_nm2
    """)
    for r in range(16): a(f"v_cndmask_b32 v{s+r}, v{s+r}, v{T2}, {sr(64+2*r,2)}")
    a("L_slow_nm2:")
    a(f"v_max3_f32 v{T0}, v{s}, v{s+1}, v{M}")
    for r in range(2, 16, 2): a(f"v_max3_f32 v{T0}, v{T0}, v{s+r}, v{s+r+1}")
    a(f"""
    v_mov_b32 v{T1}, v{T0}
    s_nop 1
    v_permlane32_swap_b32 v{T0}, v{T1}
    s_nop 1
    v_max_f32 v{T0}, v{T0}, v{T1}
    v_sub_f32 v{AL}, v{M}, v{T0}
    v_exp_f32 v{AL}, v{AL}
    v_mov_b32 v{M}, v{T0}
    """)
    for r in range(16): a(f"v_sub_f32 v{s+r}, v{s+r}, v{M}")
    for r in range(16): a(f"v_exp_f32 v{s+r}, v{s+r}")
    for r in range(16): a(f"v_mul_f32 v{O+r}, v{AL}, v{O+r}")
    a(f"""
    v_mul_f32 v{L}, v{AL}, v{L}
    s_nop 3
    {sm32(O, VA, s)}
    {sm32(O, VB, s+8)}
    {sm16(L, AS, s)}
    {sm16(L, AS, s+8)}
    s_nop 15
    s_add_u32 s54, s54, 4096
    s_cmp_lt_u32 s58, s55
    s_cbranch_scc1 L_slow_loop
    s_setpc_b64 s[52:53]
    """)
    return kdesc(K, 144)

PJ_NB = 4
PJ_LDS = PJ_NB * 32768

def gen_proj(a):
    K = "proj_kernel"
    kstart(a, K)
    a("""
    s_cmp_ge_u32 s2, 256
    s_cbranch_scc1 L_p_end
    s_load_dwordx2 s[20:21], s[0:1], 16
    s_load_dwordx2 s[22:23], s[0:1], 40
    s_load_dwordx2 s[24:25], s[0:1], 48
    s_load_dwordx2 s[28:29], s[0:1], 64
    v_lshrrev_b32 v1, 6, v0
    v_and_b32 v0, 63, v0
    s_and_b32 s30, s2, 7
    s_lshr_b32 s31, s2, 3
    v_readfirstlane_b32 s16, v1
    s_lshr_b32 s32, s30, 2        ; part
    s_and_b32 s33, s30, 3
    s_lshl_b32 s33, s33, 2
    s_and_b32 s34, s31, 3
    s_add_u32 s33, s33, s34       ; mt (0..15)
    s_lshr_b32 s34, s31, 2        ; nt (0..7)
    s_waitcnt lgkmcnt(0)
    s_cmp_eq_u32 s32, 0
    s_cselect_b32 s20, s20, s22
    s_cselect_b32 s21, s21, s23
    """)
    srd(a, 4, "s20", "s21", 1024 * 1024 * 2)
    srd(a, 8, "s24", "s25", 2048 * 2048 * 2)
    srd(a, 12, "s28", "s29", WS_SIZE)
    a("""
    s_cmp_ge_u32 s16, 4
    s_cbranch_scc1 L_p_loader
    """)
    a("""
    s_lshr_b32 s36, s16, 1
    s_and_b32 s37, s16, 1
    v_lshlrev_b32 v1, 4, v0
    s_lshl_b32 s38, s36, 13
    v_add_u32 v1, s38, v1
    v_lshrrev_b32 v7, 5, v0       ; h
    v_bfe_u32 v6, v0, 2, 2        ; r = i>>2
    v_lshl_add_u32 v5, v7, 2, v6  ; row = 4h + r
    v_lshlrev_b32 v5, 8, v5       ; *256
    v_and_b32 v4, 1, v0           ; h' = c&1
    v_lshlrev_b32 v4, 2, v4       ; 4h'
    v_bfe_u32 v7, v0, 4, 1        ; G  (g>>1)
    v_or_b32 v4, v4, v7
    s_lshl_b32 s38, s37, 3
    v_or_b32 v4, s38, v4          ; u for b=0
    v_and_b32 v7, 1, v6
    v_lshlrev_b32 v7, 1, v7
    v_xor_b32 v4, v4, v7
    v_lshrrev_b32 v7, 1, v6
    v_lshlrev_b32 v7, 3, v7
    v_xor_b32 v4, v4, v7
    v_bfe_u32 v7, v0, 1, 1        ; g&1
    v_lshl_add_u32 v5, v7, 3, v5
    v_add_u32 v5, 16384, v5
    v_lshl_add_u32 v2, v4, 4, v5
    v_xor_b32 v4, 2, v4
    v_lshl_add_u32 v3, v4, 4, v5
    """)
    ACC = 72
    for r in range(ACC, ACC + 64): a(f"v_mov_b32 v{r}, 0")
    F = [8, 40]
    def reads(fs, u):
        r = []
        for kk in range(2):
            ks = 2 * u + kk
            b = F[fs] + 16 * kk
            r.append(f"ds_read_b128 {vr(b,4)}, v1 offset:{ks*1024}")
            r.append(f"ds_read_b64_tr_b16 {vr(b+8,2)}, v2 offset:{ks*4096}")
            r.append(f"ds_read_b64_tr_b16 {vr(b+10,2)}, v2 offset:{ks*4096+2048}")
            r.append(f"ds_read_b64_tr_b16 {vr(b+12,2)}, v3 offset:{ks*4096}")
            r.append(f"ds_read_b64_tr_b16 {vr(b+14,2)}, v3 offset:{ks*4096+2048}")
            r.append(f"ds_read_b128 {vr(b+4,4)}, v1 offset:{4096+ks*1024}")
        return r
    def mfmas(fs):
        m = []
        for kk in range(2):
            b = F[fs] + 16 * kk
            for tt in range(2):
                for bb in range(2):
                    m.append(mfma(ACC + (tt * 2 + bb) * 16, b + 8 + 4 * bb, b + 4 * tt))
        return m
    a("s_mov_b32 s40, 0\ns_mov_b32 s49, 0x8000\ns_barrier")
    for r in reads(0, 0): a(r)
    a(".p2align 6\nL_p_loop:")
    for u in range(2):
        rd = reads(u ^ 1, u ^ 1); mm = mfmas(u)
        a("s_waitcnt lgkmcnt(0)")
        if u == 1:
            a("s_barrier")
            a(mm[0])
            a(f"""
            s_add_u32 s40, s40, 1
            s_and_b32 s41, s40, {PJ_NB-1}
            s_cmp_eq_u32 s41, 0
            s_cselect_b32 s43, {(-(PJ_NB-1)*32768) & 0xffffffff:#x}, s49
            v_add_u32 v1, s43, v1
            v_add_u32 v2, s43, v2
            v_add_u32 v3, s43, v3
            """)
        else:
            a(mm[0])
        a(rd[0]); a(rd[1]); a(rd[2])
        for i in range(1, 8):
            a(mm[i])
            if i < 4:
                a(rd[3 * i]); a(rd[3 * i + 1]); a(rd[3 * i + 2])
    a("s_cmp_lt_u32 s40, 16\ns_cbranch_scc1 L_p_loop")
    a("""
    s_waitcnt lgkmcnt(0)
    s_lshl_b32 s44, s33, 7
    s_lshl_b32 s45, s36, 6
    s_add_u32 s44, s44, s45
    v_and_b32 v1, 31, v0
    v_add_u32 v1, s44, v1
    v_lshlrev_b32 v1, 12, v1      ; row*4096
    v_lshrrev_b32 v2, 5, v0
    v_lshl_add_u32 v1, v2, 6, v1  ; + h'*64
    s_lshl_b32 s44, s32, 11
    s_lshl_b32 s45, s34, 8
    s_add_u32 s44, s44, s45
    s_lshl_b32 s45, s37, 7
    s_add_u32 s44, s44, s45
    s_add_u32 s45, s44, 0x20000   ; +32 rows
    s_nop 7
    """)
    for tt in range(2):
        for bb in range(2):
            d = ACC + (tt * 2 + bb) * 16
            for r in range(8): a(f"v_cvt_pk_bf16_f32 v{d+r}, v{d+2*r}, v{d+2*r+1}")
            a(f"buffer_store_dwordx4 {vr(d,4)}, v1, s[8:11], s{44+tt} offen offset:{bb*32}")
            a(f"buffer_store_dwordx4 {vr(d+4,4)}, v1, s[8:11], s{44+tt} offen offset:{bb*32+16}")
    a("s_endpgm")
    a("L_p_loader:")
    a(f"""
    s_sub_u32 s36, s16, 4
    s_lshl_b32 s37, s33, 2
    s_add_u32 s37, s37, s36
    s_lshl_b32 s37, s37, 16
    s_lshl_b32 s38, s32, 22
    s_add_u32 s37, s37, s38
    s_add_u32 s37, s37, {WS_O}
    v_lshlrev_b32 v1, 4, v0
    v_add_u32 v1, s37, v1         ; O voffset
    v_lshrrev_b32 v2, 4, v0       ; r
    v_and_b32 v3, 15, v0          ; p
    v_and_b32 v4, 1, v2
    v_lshlrev_b32 v4, 1, v4
    v_xor_b32 v3, v3, v4
    v_lshrrev_b32 v4, 1, v2
    v_lshlrev_b32 v4, 3, v4
    v_xor_b32 v3, v3, v4          ; u
    s_lshl_b32 s38, s36, 4
    v_add_u32 v2, s38, v2
    v_lshlrev_b32 v2, 11, v2      ; row*2048
    v_lshl_add_u32 v2, v3, 4, v2
    s_lshl_b32 s38, s34, 8
    v_add_u32 v2, s38, v2
    s_lshl_b32 s40, s36, 12       ; lw*4096
    """)
    for j in range(4): a(f"v_add_u32 v{8+j}, {j*4*2048 - j*1024}, v2")
    def ld(s):
        base = (s % PJ_NB) * 32768
        a(f"s_mov_b32 s42, {s*4096}\ns_mov_b32 s43, {s*64*2048}")
        a(f"s_add_u32 m0, s40, {base}\ns_nop 0")
        for j in range(4): a(f"buffer_load_dwordx4 v1, s[12:15], s42 offen offset:{j*1024} lds")
        a(f"s_add_u32 m0, s40, {base+16384}\ns_nop 0")
        for j in range(4): a(f"buffer_load_dwordx4 v{8+j}, s[4:7], s43 offen offset:{j*1024} lds")
    for s in range(PJ_NB): ld(s)
    issued = PJ_NB
    for s in range(16):
        a(f"s_waitcnt vmcnt({(issued - 1 - s) * 8})\ns_barrier")
        if s >= 1 and issued < 16:
            ld(issued); issued += 1
    a("L_p_end:\ns_endpgm")
    return kdesc(K, 136)

def main():
    a = Asm()
    hdr = open("cdna_kernels/%s.s.ref" % NAME).read().split("\n")
    head = [l for l in hdr if l.startswith(";") and "@launch" not in l and "Override" not in l and "grid=ceil" not in l]
    txt = "\n".join(head) + "\n"
    txt += f"; @launch kernel=qkv_kernel grid=(256,1,1) block=(512,1,1) lds={G1_LDS}\n"
    txt += f"; @launch kernel=attn_kernel grid=(256,1,1) block=(512,1,1) lds={AT_LDS}\n"
    txt += f"; @launch kernel=proj_kernel grid=(256,1,1) block=(512,1,1) lds={PJ_LDS}\n"
    txt += '.amdgcn_target "amdgcn-amd-amdhsa--gfx950"\n.text\n'
    d = [gen_qkv(a), gen_attn(a), gen_proj(a)]
    txt += a.text()
    txt += '.section .rodata,"a"\n' + "".join(d)
    out = sys.argv[1] if len(sys.argv) > 1 else OUT
    open(out, "w").write(txt)
    print("wrote", out, len(txt))

if __name__ == "__main__":
    main()
```

```python
import sys, math, struct

NAME = "concat_heads__sliding_block__mha_block__prompt"
OUT = "cdna_kernels/%s.s" % NAME

def f32(x): return struct.unpack("<I", struct.pack("<f", x))[0]

class Asm:
    def __init__(self): self.l = []
    def __call__(self, s):
        for line in s.strip("\n").split("\n"):
            line = line.strip()
            if not line: continue
            self.l.append(line if line.endswith(":") or line.startswith(".") else "    " + line)
    def text(self): return "\n".join(self.l) + "\n"

def vr(a, n): return "v[%d:%d]" % (a, a + n - 1)
def sr(a, n): return "s[%d:%d]" % (a, a + n - 1)

MB = 1 << 20
OPT = dict(q_sc="sc1", a_sc="sc1", p_sc="", q_touch=1, a_delay=1)
WS_Q, WS_KV, WS_O, WS_SIZE = 0, 8 * MB, 24 * MB, 34 * MB

def srd(a, s, lo, hi, size):
    a(f"""
    s_mov_b32 s{s}, {lo}
    s_mov_b32 s{s+1}, {hi}
    s_mov_b32 s{s+2}, {size:#x}
    s_mov_b32 s{s+3}, 0x00020000
    """)

def kstart(a, name):
    a(f"""
    .globl {name}
    .p2align 8
    .type {name},@function
    {name}:
    """)

def kdesc(name, nfv, nsgpr=102):
    acc = (nfv + 3) // 4 * 4
    return f"""
.p2align 6
.amdhsa_kernel {name}
  .amdhsa_next_free_vgpr {nfv}
  .amdhsa_next_free_sgpr {nsgpr}
  .amdhsa_accum_offset {acc}
  .amdhsa_group_segment_fixed_size 0
  .amdhsa_kernarg_size 72
  .amdhsa_user_sgpr_count 2
  .amdhsa_user_sgpr_kernarg_segment_ptr 1
  .amdhsa_system_sgpr_workgroup_id_x 1
.end_amdhsa_kernel
"""

STAMP = False
class Stamper:
    def __init__(self, a, vreg, kidx): self.a, self.v, self.k = a, vreg, kidx
    def __call__(self, n):
        if not STAMP: return
        self.a(f"""
        s_memtime s[96:97]
        s_memrealtime s[98:99]
        s_waitcnt lgkmcnt(0)
        v_writelane_b32 v{self.v}, s96, {n}
        v_writelane_b32 v{self.v}, s98, {32+n}
        """)
    def dyn(self, sidx, mul, add):
        if not STAMP: return
        self.a(f"""
        s_memtime s[96:97]
        s_mul_i32 s98, {sidx}, {mul}
        s_add_u32 m0, s98, {add}
        s_waitcnt lgkmcnt(0)
        v_writelane_b32 v{self.v}, s96, m0
        """)
    def flush(self, tmp, lane="v0"):
        if not STAMP: return
        self.a(f"""
        s_lshl_b32 s96, s2, 3
        s_add_u32 s96, s96, s16
        s_lshl_b32 s96, s96, 8
        s_add_u32 s96, s96, {WS_SIZE - 2*MB + self.k * 512 * 1024}
        v_lshlrev_b32 v{tmp}, 2, {lane}
        buffer_store_dword v{self.v}, v{tmp}, s[12:15], s96 offen
        """)

def mfma(d, A, B, C=None):
    c = vr(d, 16) if C is None else (C if isinstance(C, str) else vr(C, 16))
    return f"v_mfma_f32_32x32x16_bf16 {vr(d,16)}, {vr(A,4)}, {vr(B,4)}, {c}"

G1_XB = [0, 32768, 65536]
G1_WB = [98304, 122880]
G1_LDS = 147456

def gen_qkv(a):
    K = "qkv_kernel"
    kstart(a, K)
    a("""
    s_cmp_ge_u32 s2, 256
    s_cbranch_scc1 L_q_end
    s_load_dwordx4 s[20:23], s[0:1], 0
    s_load_dwordx2 s[24:25], s[0:1], 24
    s_load_dwordx2 s[26:27], s[0:1], 32
    s_load_dwordx2 s[28:29], s[0:1], 64
    v_lshrrev_b32 v1, 6, v0
    v_and_b32 v0, 63, v0
    s_and_b32 s30, s2, 7          ; xcd
    s_lshr_b32 s31, s2, 3         ; idx
    v_readfirstlane_b32 s16, v1
    s_lshr_b32 s32, s30, 2        ; part
    s_bfe_u32 s33, s30, 0x10001   ; (xcd>>1)&1
    s_lshl_b32 s33, s33, 2
    s_and_b32 s34, s31, 3
    s_add_u32 s33, s33, s34       ; mt
    s_and_b32 s34, s30, 1
    s_lshl_b32 s34, s34, 3
    s_lshr_b32 s35, s31, 2
    s_add_u32 s34, s34, s35       ; nt
    s_waitcnt lgkmcnt(0)
    s_cmp_eq_u32 s32, 0
    s_cselect_b32 s20, s20, s24
    s_cselect_b32 s21, s21, s25
    s_cselect_b32 s22, s22, s26
    s_cselect_b32 s23, s23, s27
    """)
    srd(a, 4, "s20", "s21", 2048 * 1024 * 2)
    srd(a, 8, "s22", "s23", 1024 * 3072 * 2)
    srd(a, 12, "s28", "s29", WS_SIZE)
    st = Stamper(a, 7, 0)
    a("""
    s_cmp_ge_u32 s16, 4
    s_cbranch_scc1 L_q_loader
    """)
    a("""
    s_lshr_b32 s36, s16, 1        ; wm
    s_and_b32 s37, s16, 1         ; wh
    v_and_b32 v6, 31, v0          ; t
    v_lshrrev_b32 v7, 5, v0       ; h
    v_bfe_u32 v5, v0, 1, 3        ; f = (t>>1)&7
    v_lshlrev_b32 v6, 7, v6       ; t*128
    s_lshl_b32 s38, s36, 14
    v_add_u32 v6, s38, v6         ; + wm*16384
    """)
    for ks in range(4):
        a(f"""
        v_or_b32 v{1+ks}, {2*ks}, v7
        v_xor_b32 v{1+ks}, v{1+ks}, v5
        v_lshl_add_u32 v{1+ks}, v{1+ks}, 4, v6
        """)
    a(f"""
    v_bfe_u32 v6, v0, 2, 2        ; i>>2
    v_lshl_add_u32 v6, v7, 3, v6  ; 8h + (i>>2)
    v_lshlrev_b32 v6, 7, v6
    v_bfe_u32 v5, v0, 3, 1
    v_xor_b32 v5, s37, v5
    v_lshl_add_u32 v6, v5, 6, v6
    v_bfe_u32 v5, v0, 4, 1
    v_lshl_add_u32 v6, v5, 5, v6
    v_and_b32 v5, 3, v0
    v_lshl_add_u32 v5, v5, 3, v6
    v_add_u32 v5, {G1_WB[0]}, v5
    """)
    st(0)
    for r in range(64, 256): a(f"v_mov_b32 v{r}, 0")
    F = [8, 36]
    def reads(fs, ks):
        r = []
        for tt in range(4):
            r.append(f"ds_read_b128 {vr(F[fs]+4*tt,4)}, v{1+ks} offset:{tt*4096}")
        for sec in range(3):
            for half in range(2):
                r.append(f"ds_read_b64_tr_b16 {vr(F[fs]+16+4*sec+2*half,2)}, v5 offset:{sec*8192+ks*2048+half*512}")
        return [r[0], r[4], r[5], r[6], r[7], r[8], r[9], r[1], r[2], r[3]]
    def mfmas(fs):
        m = []
        for tt in range(4):
            for sec in range(3):
                d = 64 + (tt * 3 + sec) * 16
                x, w = F[fs] + 4 * tt, F[fs] + 16 + 4 * sec
                m.append(mfma(d, w, x) if sec < 2 else mfma(d, x, w))
        return m
    a("""
    s_mov_b32 s40, 0
    s_mov_b32 s41, 0              ; x buffer index (s%3)
    s_mov_b32 s42, 24576          ; w delta
    s_mov_b32 s49, 0x8000
    s_barrier
    """)
    st(1)
    for r in reads(0, 0): a(r)
    a(".p2align 6")
    a("L_q_loop:")
    for ks in range(4):
        cur, nxt = ks & 1, (ks + 1) & 1
        rd = reads(nxt, (ks + 1) & 3)
        mm = mfmas(cur)
        a("s_waitcnt lgkmcnt(0)")
        if ks == 3:
            a("s_barrier")
            a(mm[0])
            a("""
            s_add_u32 s41, s41, 1
            s_cmp_eq_u32 s41, 3
            s_cselect_b32 s43, 0xffff0000, s49
            s_cselect_b32 s41, 0, s41
            v_add_u32 v1, s43, v1
            v_add_u32 v5, s42, v5
            """)
            a(rd[0]); a(rd[1])
            a(mm[1])
            a("""
            v_add_u32 v2, s43, v2
            v_add_u32 v3, s43, v3
            v_add_u32 v4, s43, v4
            s_sub_u32 s42, 0, s42
            """)
            a(rd[2]); a(rd[3])
            i0 = 2
        else:
            i0 = 0
        for i in range(i0, 12):
            a(mm[i])
            if i < 5:
                a(rd[2 * i]); a(rd[2 * i + 1])
            if ks == 3 and i == 10:
                a("s_add_u32 s40, s40, 1\ns_cmp_lt_u32 s40, 16")
    a("s_cbranch_scc1 L_q_loop")
    st(2)
    c = math.log2(math.e) / math.sqrt(32.0)
    SC = OPT["q_sc"]
    a(f"""
    s_waitcnt lgkmcnt(0)
    s_lshl_b32 s44, s34, 1
    s_add_u32 s44, s44, s37       ; head
    s_lshl_b32 s44, s44, 6
    s_lshl_b32 s45, s33, 3
    s_add_u32 s44, s44, s45
    s_lshl_b32 s45, s36, 2
    s_add_u32 s44, s44, s45
    s_lshl_b32 s46, s44, 11
    s_lshl_b32 s45, s32, 22
    s_add_u32 s46, s46, s45       ; Q base
    s_lshl_b32 s47, s44, 12
    s_lshl_b32 s45, s32, 23
    s_add_u32 s47, s47, s45
    s_add_u32 s47, s47, {WS_KV}
    s_mov_b32 s48, {f32(c):#x}
    v_lshlrev_b32 v1, 4, v0       ; lane*16
    v_and_b32 v2, 0x33, v0
    v_bfe_u32 v3, v0, 2, 1
    v_lshl_or_b32 v2, v3, 3, v2
    v_bfe_u32 v3, v0, 3, 1
    v_lshl_or_b32 v2, v3, 2, v2
    v_lshlrev_b32 v2, 4, v2       ; swap23(lane)*16
    """)
    for tt in range(4):
        for sec in range(3):
            d = 64 + (tt * 3 + sec) * 16
            if sec == 0:
                for r in range(16): a(f"v_mul_f32 v{d+r}, s48, v{d+r}")
            for r in range(8): a(f"v_cvt_pk_bf16_f32 v{d+r}, v{d+2*r}, v{d+2*r+1}")
            if sec == 0:
                a(f"buffer_store_dwordx4 {vr(d,4)}, v1, s[12:15], s46 offen {SC}")
                a(f"buffer_store_dwordx4 {vr(d+4,4)}, v1, s[12:15], s46 offen offset:1024 {SC}")
            elif sec == 1:
                a(f"buffer_store_dwordx4 {vr(d,4)}, v2, s[12:15], s47 offen {SC}")
                a(f"buffer_store_dwordx4 {vr(d+4,4)}, v2, s[12:15], s47 offen offset:1024 {SC}")
            else:
                a(f"buffer_store_dwordx4 {vr(d,4)}, v1, s[12:15], s47 offen offset:2048 {SC}")
                a(f"buffer_store_dwordx4 {vr(d+4,4)}, v1, s[12:15], s47 offen offset:3072 {SC}")
        a("s_add_u32 s46, s46, 2048\ns_add_u32 s47, s47, 4096")
    st(3)
    if STAMP: a("s_waitcnt vmcnt(0)")
    st(4)
    st.flush(1)
    a("s_endpgm")
    a("L_q_loader:")
    a("""
    s_sub_u32 s36, s16, 4         ; lw
    v_lshrrev_b32 v1, 3, v0       ; l>>3
    v_and_b32 v2, 7, v0           ; l&7
    v_lshrrev_b32 v3, 4, v0       ; l>>4
    s_lshl_b32 s37, s33, 8
    s_lshl_b32 s38, s36, 6
    s_add_u32 s37, s37, s38
    v_add_u32 v4, s37, v1
    v_lshlrev_b32 v4, 11, v4      ; row*2048
    v_xor_b32 v5, v2, v3
    v_xor_b32 v6, 4, v5
    v_lshl_add_u32 v5, v5, 4, v4
    v_lshl_add_u32 v6, v6, 4, v4
    """)
    for n in range(8):
        a(f"v_add_u32 v{8+n}, {n*16384}, v{5 + (n & 1)}")
    a("""
    s_lshl_b32 s38, s36, 4
    v_add_u32 v4, s38, v1
    s_mov_b32 s39, 6144
    v_mul_lo_u32 v4, v4, s39
    v_and_b32 v3, 1, v3
    v_lshlrev_b32 v3, 2, v3
    v_xor_b32 v5, v2, v3
    v_lshl_add_u32 v4, v5, 4, v4
    s_lshl_b32 s38, s34, 7        ; nt*128
    v_add_u32 v4, s38, v4
    """)
    for sec in range(3):
        for jj in range(2):
            a(f"v_add_u32 v{16+sec*2+jj}, {sec*2048 + jj*8*6144}, v4")
    a("""
    s_lshl_b32 s40, s36, 13
    s_lshl_b32 s41, s36, 11
    """)
    def ldx(s):
        a(f"s_mov_b32 s42, {s*128}")
        for n in range(8):
            a(f"s_add_u32 m0, s40, {G1_XB[s%3] + n*1024}\ns_nop 0")
            a(f"buffer_load_dwordx4 v{8+n}, s[4:7], s42 offen lds")
    def ldw(s):
        a(f"s_mov_b32 s43, {s*64*6144}")
        for sec in range(3):
            for jj in range(2):
                a(f"s_add_u32 m0, s41, {G1_WB[s%2] + sec*8192 + jj*1024}\ns_nop 0")
                a(f"buffer_load_dwordx4 v{16+sec*2+jj}, s[8:11], s43 offen lds")
    TCH = OPT["q_touch"]
    ldx(0); ldw(0); ldx(1); ldw(1); ldx(2)
    if TCH:
        a(f"""
        v_bfe_u32 v24, v0, 4, 1
        v_and_b32 v25, 15, v0
        v_lshl_add_u32 v24, v24, 6, v25   ; 64*((l>>4)&1) + (l&15)
        s_and_b32 s50, s33, 3
        s_lshl_b32 s50, s50, 4
        v_add_u32 v24, s50, v24           ; + 16*mtl
        v_mul_lo_u32 v24, v24, s39
        s_lshl_b32 s50, s36, 11
        s_add_u32 s50, s50, s38
        v_add_u32 v24, s50, v24
        v_and_b32 v25, 31, v0
        s_and_b32 s50, s34, 7
        s_lshl_b32 s50, s50, 5
        s_lshl_b32 s51, s33, 8
        s_add_u32 s50, s50, s51
        v_add_u32 v25, s50, v25           ; row
        v_lshlrev_b32 v25, 11, v25
        v_lshrrev_b32 v26, 5, v0
        v_lshl_add_u32 v25, v26, 7, v25
        s_cmp_eq_u32 s36, 3
        s_cselect_b32 s52, s4, s8
        s_cselect_b32 s53, s5, s9
        s_cselect_b32 s54, s6, s10
        s_mov_b32 s55, 0x00020000
        s_mov_b32 s51, {128*6144}
        s_cselect_b32 s51, 256, s51
        s_cselect_b64 vcc, -1, 0
        s_mov_b32 s50, s51
        v_cndmask_b32 v24, v24, v25, vcc
        """)
    def touch():
        a("buffer_load_dword v27, v24, s[52:55], s50 offen\ns_add_u32 s50, s50, s51")
    if TCH: touch()
    a(f"s_waitcnt vmcnt({22+TCH})\ns_barrier")
    a(f"s_waitcnt vmcnt({8+TCH})\ns_barrier")
    for s in range(1, 15):
        ldw(s + 1)
        if s + 2 < 16:
            ldx(s + 2)
            t = 1 if (TCH and s <= 6) else 0
            if t: touch()
            a(f"s_waitcnt vmcnt({8+t})\ns_barrier")
        else:
            a("s_waitcnt vmcnt(0)\ns_barrier")
    a("L_q_end:\ns_endpgm")
    return kdesc(K, 256)

AT_LDS = 131072
R_OFF = 64.0
T_HI = 2.0 ** 48

def upper_mask(r):
    m = 0
    for l in range(64):
        key = (r & 7) + 8 * (l >> 5) + 16 * (r >> 3)
        if key > (l & 31): m |= 1 << l
    return m

def gen_attn(a):
    K = "attn_kernel"
    kstart(a, K)
    S = [16, 32]; O = 48; NM = 64; L = 80; QF = 84; KF = 92; VA = 100; VB = 104; AS = 108; IDX = 112
    VK, VKN, VLANE, T0, T1, T2 = 1, 2, 3, 4, 5, 6
    VDMA = 7; QA = 116; MK = 124
    VTCH = 9
    NINF = 0xff800000
    SC = OPT["a_sc"]
    def sm32(d, A, B): return f"v_smfmac_f32_32x32x32_bf16 {vr(d,16)}, {vr(A,4)}, {vr(B,8)}, v{IDX}"
    def sm16(d, A, B): return f"v_smfmac_f32_16x16x64_bf16 {vr(d,4)}, {vr(A,4)}, {vr(B,8)}, v{IDX}"
    a(f"""
    s_cmp_ge_u32 s2, 256
    s_cbranch_scc1 L_a_end
    s_load_dwordx2 s[28:29], s[0:1], 64
    s_load_dwordx2 s[20:21], s[0:1], 16
    s_load_dwordx2 s[22:23], s[0:1], 40
    v_lshrrev_b32 v1, 6, v0
    v_and_b32 v0, 63, v0
    s_and_b32 s30, s2, 7
    s_lshr_b32 s31, s2, 3
    v_readfirstlane_b32 s16, v1   ; wave
    s_lshl_b32 s32, s30, 2
    s_and_b32 s33, s31, 3
    s_add_u32 s32, s32, s33       ; head
    s_lshr_b32 s33, s31, 2        ; qb
    s_lshl_b32 s34, s33, 3
    s_add_u32 s34, s34, s16       ; q tile
    v_lshlrev_b32 v{VLANE}, 4, v0
    s_lshl_b32 s35, s16, 12       ; w*4096
    v_add_u32 v{VDMA}, s35, v{VLANE}
    s_lshl_b32 s36, s32, 18       ; head*64*4096
    s_add_u32 s37, s36, {WS_KV + 8*MB}
    s_lshl_b32 s39, s32, 6
    s_add_u32 s39, s39, s34
    s_lshl_b32 s39, s39, 11       ; Q offset (A)
    s_add_u32 s40, s39, {4*MB}    ; Q offset (B)
    s_mov_b32 m0, s35
    s_mov_b32 s14, {WS_SIZE:#x}
    s_mov_b32 s15, 0x00020000
    s_waitcnt lgkmcnt(0)
    s_mov_b32 s12, s28
    s_mov_b32 s13, s29
    """)
    st = Stamper(a, 8, 1)
    st(0)
    def dma(sptr):
        for i in range(4):
            a(f"buffer_load_dwordx4 v{VDMA}, s[12:15], {sptr} offen offset:{i*1024} lds")
    dma("s37")
    a(f"""
    buffer_load_dwordx4 {vr(QF,4)}, v{VLANE}, s[12:15], s40 offen
    buffer_load_dwordx4 {vr(QF+4,4)}, v{VLANE}, s[12:15], s40 offen offset:1024
    s_lshl_b32 s38, s33, 15
    s_add_u32 s38, s38, s36
    s_add_u32 s38, s38, {WS_KV - 32768}
    s_lshl_b32 s41, s34, 5
    s_add_u32 s41, s41, s32
    s_lshl_b32 s41, s41, 11
    s_add_u32 s41, s41, {WS_O}    ; O offset (A)
    s_add_u32 s42, s41, {4*MB}    ; O offset (B)
    s_cmp_lt_u32 s2, 128
    s_cselect_b32 s20, s20, s22
    s_cselect_b32 s21, s21, s23
    """)
    srd(a, 4, "s20", "s21", 1024 * 1024 * 2)
    def later_loads():
        a("s_add_u32 s43, s35, 32768\ns_add_u32 s44, s37, 32768")
        for c in range(2):
            a("s_mov_b32 m0, s43\ns_nop 0")
            dma("s44")
            a("s_add_u32 s44, s44, 32768\ns_add_u32 s43, s43, 32768")
        a(f"""
        buffer_load_dwordx4 {vr(QA,4)}, v{VLANE}, s[12:15], s39 offen
        buffer_load_dwordx4 {vr(QA+4,4)}, v{VLANE}, s[12:15], s39 offen offset:1024
        s_and_b32 s50, s2, 127
        s_lshl_b32 s50, s50, 3
        s_add_u32 s50, s50, s16
        s_lshl_b32 s50, s50, 11
        v_lshlrev_b32 v{VTCH}, 5, v0
        buffer_load_dword v{VTCH}, v{VTCH}, s[4:7], s50 offen
        """)
    if not OPT["a_delay"]: later_loads()
    a(f"""
    v_mov_b32 v{IDX}, 0xdddddddd
    v_and_b32 v{T0}, 7, v0
    v_mov_b32 v{T1}, 0x3f803f80
    v_cmp_eq_u32 vcc, 0, v{T0}
    s_nop 1
    v_cndmask_b32 v{AS}, 0, v{T1}, vcc
    v_cndmask_b32 v{AS+1}, 0, v{T1}, vcc
    v_cmp_eq_u32 vcc, 4, v{T0}
    s_nop 1
    v_cndmask_b32 v{AS+2}, 0, v{T1}, vcc
    v_cndmask_b32 v{AS+3}, 0, v{T1}, vcc
    v_mov_b32 v{VK}, v{VLANE}
    v_add_u32 v{VKN}, 65536, v{VLANE}
    v_mov_b32 v{T2}, {NINF:#x}
    s_mov_b32 s46, {f32(T_HI):#x}
    s_mov_b32 s47, {f32(R_OFF):#x}
    """)
    for r in range(16):
        m = upper_mask(r)
        a(f"s_mov_b32 s{64+2*r}, {m & 0xffffffff:#x}\ns_mov_b32 s{65+2*r}, {m >> 32:#x}")

    def zero_acc():
        for r in range(16): a(f"v_mov_b32 v{O+r}, 0")
        for r in range(4): a(f"v_mov_b32 v{L+r}, 0")

    def first_tile(q, addr0, off0, addr1, off1, after_mfma=None, fix=None):
        a(f"""
        ds_read_b128 {vr(KF,4)}, v{addr0} offset:{off0}
        ds_read_b128 {vr(KF+4,4)}, v{addr0} offset:{off0+1024}
        s_waitcnt lgkmcnt(0)
        {mfma(S[0], KF, q, "0")}
        {mfma(S[0], KF+4, q+4)}
        ds_read_b128 {vr(KF,4)}, v{addr1} offset:{off1}
        ds_read_b128 {vr(KF+4,4)}, v{addr1} offset:{off1+1024}
        ds_read_b128 {vr(VA,4)}, v{addr0} offset:{off0+2048}
        """)
        if after_mfma: after_mfma()
        a("s_nop 12")
        if fix: fix()
        s = S[0]
        a(f"v_max3_f32 v{T0}, v{s}, v{s+1}, v{s+2}")
        for r in range(3, 15, 2): a(f"v_max3_f32 v{T0}, v{T0}, v{s+r}, v{s+r+1}")
        a(f"""
        v_max_f32 v{T0}, v{T0}, v{s+15}
        v_mov_b32 v{T1}, v{T0}
        s_nop 1
        v_permlane32_swap_b32 v{T0}, v{T1}
        s_nop 1
        v_max_f32 v{T0}, v{T0}, v{T1}
        v_add_f32 v{T0}, s47, v{T0}
        v_sub_f32 v{NM}, 0, v{T0}
        """)
        for r in range(1, 16): a(f"v_mov_b32 v{NM+r}, v{NM}")
        for r in range(16): a(f"v_add_f32 v{s+r}, v{NM}, v{s+r}")

    rescue_sites = []
    def tile_iter(i, q, rdVb, rdK, rdVa, first=False, cblk=NM, pre_qk=None, do_qk=True, chk=None):
        s, sp = S[i & 1], S[(i + 1) & 1]
        e = [f"v_exp_f32 v{s+r}, v{s+r}" for r in range(16)]
        a(e[0]); a(e[1])
        if not first: a(sm32(O, VB, sp + 8))
        a(rdVb)
        a(e[2]); a(e[3]); a(e[4])
        if not first: a(sm16(L, AS, sp + 8))
        a("s_waitcnt lgkmcnt(3)")
        if pre_qk: pre_qk()
        a(e[5])
        if do_qk: a(mfma(sp, KF, q, cblk))
        a("s_waitcnt lgkmcnt(2)")
        a(rdK[0])
        a(e[6]); a(e[7]); a(e[8])
        if do_qk: a(mfma(sp, KF + 4, q + 4))
        a("s_waitcnt lgkmcnt(2)")
        a(rdK[1])
        a(e[9]); a(e[10]); a(e[11])
        a(sm32(O, VA, s))
        a(rdVa)
        a(e[12]); a(e[13])
        if chk: a(f"v_cmp_lt_f32 vcc, s46, v{L}")
        a(e[14])
        a(sm16(L, AS, s))
        a("s_waitcnt lgkmcnt(3)")
        if chk:
            a(f"s_cbranch_vccnz L_resc_{chk}")
            a(f"L_back_{chk}:")
            rescue_sites.append((i & 1, chk))
        a(e[15])

    def finish(i_last, ooff, tag, slow_args):
        sp = S[i_last & 1]
        a(f"""
        s_waitcnt lgkmcnt(0)
        s_nop 1
        {sm32(O, VB, sp + 8)}
        {sm16(L, AS, sp + 8)}
        s_nop 12
        v_mul_f32 v{T0}, 0, v{L}
        """)
        for r in range(16): a(f"v_fma_f32 v{T0}, v{O+r}, 0, v{T0}")
        a(f"""
        v_rcp_f32 v{T1}, v{L}
        v_cmp_u_f32 vcc, v{T0}, v{T0}
        s_nop 1
        s_cbranch_vccz L_ok_{tag}
        {slow_args}
        s_call_b64 s[52:53], L_slow
        v_rcp_f32 v{T1}, v{L}
        s_nop 0
        L_ok_{tag}:
        """)
        for r in range(16): a(f"v_mul_f32 v{O+r}, v{T1}, v{O+r}")
        for r in range(8): a(f"v_cvt_pk_bf16_f32 v{MK+r}, v{O+2*r}, v{O+2*r+1}")
        a(f"""
        buffer_store_dwordx4 {vr(MK,4)}, v{VLANE}, s[12:15], {ooff} offen {SC}
        buffer_store_dwordx4 {vr(MK+4,4)}, v{VLANE}, s[12:15], {ooff} offen offset:1024 {SC}
        """)

    zero_acc()
    for r in range(8): a(f"v_mov_b32 v{S[1]+8+r}, 0")
    for r in range(4): a(f"v_mov_b32 v{VB+r}, 0")
    a("s_mov_b32 s45, 0")
    a(f"s_waitcnt vmcnt({0 if OPT['a_delay'] else 11})\ns_barrier")
    st(1)
    first_tile(QF, VK, 0, VK, 4096, after_mfma=(later_loads if OPT["a_delay"] else None))
    a(".p2align 6")
    a("L_a_loop:")
    for i in range(16):
        def rd(reg, tile, sub):
            if tile < 16: return f"ds_read_b128 {vr(reg,4)}, v{VK} offset:{tile*4096+sub*1024}"
            return f"ds_read_b128 {vr(reg,4)}, v{VKN} offset:{(tile-16)*4096+sub*1024}"
        mid = None
        if i % 8 == 6:
            def mid():
                st.dyn("s45", 3, 8)
                a("s_waitcnt vmcnt(4)")
                st.dyn("s45", 3, 9)
                a("s_barrier")
                st.dyn("s45", 3, 10)
                a(f"""
                s_cmp_eq_u32 s45, 5
                s_cselect_b32 s44, s38, s44
                s_mov_b32 m0, s43
                s_cmp_ge_u32 s45, 7
                s_cbranch_scc1 L_a_nodma{i}
                """)
                dma("s44")
                a(f"""
                s_add_u32 s44, s44, 32768
                s_add_u32 s43, s43, 32768
                s_and_b32 s43, s43, 0x1ffff
                L_a_nodma{i}:
                s_add_u32 s45, s45, 1
                """)
        tile_iter(i, QF, rd(VB, i, 3), [rd(KF, i + 2, 0), rd(KF + 4, i + 2, 1)], rd(VA, i + 1, 2), pre_qk=mid,
                  chk=(f"b{i}" if i % 4 == 3 else None))
    a(f"""
    v_swap_b32 v{VK}, v{VKN}
    s_cmp_lt_u32 s45, 8
    s_cbranch_scc1 L_a_loop
    """)
    st(2)
    finish(15, "s42", "b", f"s_mov_b32 s54, s37\ns_mov_b32 s55, 64\ns_mov_b32 s56, 0\ns_mov_b32 s57, s40")
    zero_acc()
    a(f"""
    v_add_u32 v{VK}, s35, v{VLANE}      ; + w*4096
    s_add_u32 s48, s16, 1
    s_cmp_eq_u32 s33, 0
    s_cselect_b32 s48, s48, 99
    s_cmp_eq_u32 s48, 1
    s_cselect_b32 s50, 4096, 0
    v_add_u32 v{VKN}, s50, v{VK}
    """)
    st(3)
    a("s_waitcnt vmcnt(2)\ns_barrier")
    st(4)
    J = [7, 8, 6, 5, 4, 3, 2, 1, 0]
    def fix0():
        a("s_cmp_lg_u32 s48, 1\ns_cbranch_scc1 L_a_nofix0")
        for r in range(16): a(f"v_cndmask_b32 v{S[0]+r}, v{S[0]+r}, v{T2}, {sr(64+2*r,2)}")
        a("L_a_nofix0:")
    first_tile(QA, VKN, J[0] * 4096, VK, J[1] * 4096, fix=fix0)
    inval_sites = []
    for i in range(9):
        def rd(reg, t, sub):
            t = min(t, 8)
            return f"ds_read_b128 {vr(reg,4)}, v{VKN if t == 0 else VK} offset:{J[t]*4096+sub*1024}"
        def pre(i=i):
            if i + 1 <= 8:
                a(f"s_cmp_eq_u32 s48, {i+1}\ns_cbranch_scc1 L_a_inv{i}\nL_a_val{i}:")
                inval_sites.append(i)
            if i == 0:
                for r in range(16): a(f"v_cndmask_b32 v{MK+r}, v{NM+r}, v{T2}, {sr(64+2*r,2)}")
                a("s_nop 0")
            if i == 7:
                for r in range(16): a(f"v_cndmask_b32 v{MK+r}, v{T2}, v{NM+r}, {sr(64+2*r,2)}")
                a("s_nop 0")
        tile_iter(i, QA, rd(VB, i, 3), [rd(KF, i + 2, 0), rd(KF + 4, i + 2, 1)], rd(VA, i + 1, 2), first=(i == 0),
                  cblk=(MK if i in (0, 7) else NM), pre_qk=pre, do_qk=(i < 8), chk=(f"a{i}" if i in (2, 5) else None))
    finish(8, "s41", "a", f"""
    s_add_u32 s54, s38, s35
    s_mov_b32 s55, 9
    s_mov_b32 s56, 1
    s_cmp_eq_u32 s33, 0
    s_cbranch_scc0 L_a_slowargs
    s_add_u32 s54, s38, 32768
    s_mov_b32 s55, s48
    s_mov_b32 s56, 2
    L_a_slowargs:
    s_mov_b32 s57, s39""")
    st(5)
    if STAMP: a("s_waitcnt vmcnt(0)")
    st(6)
    st.flush(T0)
    a("L_a_end:\ns_endpgm")
    for i in inval_sites:
        a(f"L_a_inv{i}:\ns_nop 7")
        for r in range(16): a(f"v_mov_b32 v{NM+r}, v{T2}")
        a(f"s_nop 1\ns_branch L_a_val{i}")
    for par, tag in rescue_sites:
        s, sp = S[par], S[par ^ 1]
        a(f"""
        L_resc_{tag}:
        s_nop 15
        v_frexp_exp_i32_f32 v{T0}, v{L}
        v_add_u32 v{T0}, {int(R_OFF)}, v{T0}     ; delta
        v_cvt_f32_i32 v{T1}, v{T0}
        v_sub_u32 v{T0}, 0, v{T0}
        """)
        for r in range(16): a(f"v_ldexp_f32 v{O+r}, v{O+r}, v{T0}")
        a(f"v_ldexp_f32 v{L}, v{L}, v{T0}")
        for r in range(8, 15): a(f"v_ldexp_f32 v{s+r}, v{s+r}, v{T0}")
        a(f"v_sub_f32 v{s+15}, v{s+15}, v{T1}")
        for r in range(16): a(f"v_sub_f32 v{sp+r}, v{sp+r}, v{T1}")
        for r in range(16): a(f"v_sub_f32 v{NM+r}, v{NM+r}, v{T1}")
        a(f"s_nop 1\ns_branch L_back_{tag}")
    s = S[0]; M = S[1]; AL = S[1] + 1
    a(f"""
    L_slow:
    buffer_load_dwordx4 {vr(QF,4)}, v{VLANE}, s[12:15], s57 offen
    buffer_load_dwordx4 {vr(QF+4,4)}, v{VLANE}, s[12:15], s57 offen offset:1024
    v_mov_b32 v{M}, 0xff7fffff
    s_mov_b32 s58, 0
    """)
    zero_acc()
    a(f"""
    L_slow_loop:
    buffer_load_dwordx4 {vr(KF,4)}, v{VLANE}, s[12:15], s54 offen
    buffer_load_dwordx4 {vr(KF+4,4)}, v{VLANE}, s[12:15], s54 offen offset:1024
    buffer_load_dwordx4 {vr(VA,4)}, v{VLANE}, s[12:15], s54 offen offset:2048
    buffer_load_dwordx4 {vr(VB,4)}, v{VLANE}, s[12:15], s54 offen offset:3072
    s_waitcnt vmcnt(0)
    {mfma(s, KF, QF, "0")}
    {mfma(s, KF+4, QF+4)}
    s_nop 15
    s_cmp_eq_u32 s56, 1
    s_cbranch_scc0 L_slow_nm1
    s_cmp_eq_u32 s58, 0
    s_cbranch_scc0 L_slow_nm1
    """)
    for r in range(16): a(f"v_cndmask_b32 v{s+r}, v{T2}, v{s+r}, {sr(64+2*r,2)}")
    a(f"""
    L_slow_nm1:
    s_add_u32 s58, s58, 1
    s_cmp_eq_u32 s56, 0
    s_cbranch_scc1 L_slow_nm2
    s_cmp_eq_u32 s58, s55
    s_cbranch_scc0 L_slow_nm2
    """)
    for r in range(16): a(f"v_cndmask_b32 v{s+r}, v{s+r}, v{T2}, {sr(64+2*r,2)}")
    a("L_slow_nm2:")
    a(f"v_max3_f32 v{T0}, v{s}, v{s+1}, v{M}")
    for r in range(2, 16, 2): a(f"v_max3_f32 v{T0}, v{T0}, v{s+r}, v{s+r+1}")
    a(f"""
    v_mov_b32 v{T1}, v{T0}
    s_nop 1
    v_permlane32_swap_b32 v{T0}, v{T1}
    s_nop 1
    v_max_f32 v{T0}, v{T0}, v{T1}
    v_sub_f32 v{AL}, v{M}, v{T0}
    v_exp_f32 v{AL}, v{AL}
    v_mov_b32 v{M}, v{T0}
    """)
    for r in range(16): a(f"v_sub_f32 v{s+r}, v{s+r}, v{M}")
    for r in range(16): a(f"v_exp_f32 v{s+r}, v{s+r}")
    for r in range(16): a(f"v_mul_f32 v{O+r}, v{AL}, v{O+r}")
    a(f"""
    v_mul_f32 v{L}, v{AL}, v{L}
    s_nop 3
    {sm32(O, VA, s)}
    {sm32(O, VB, s+8)}
    {sm16(L, AS, s)}
    {sm16(L, AS, s+8)}
    s_nop 15
    s_add_u32 s54, s54, 4096
    s_cmp_lt_u32 s58, s55
    s_cbranch_scc1 L_slow_loop
    s_setpc_b64 s[52:53]
    """)
    return kdesc(K, 144)

PJ_NB = 4
PJ_LDS = PJ_NB * 32768

def gen_proj(a):
    K = "proj_kernel"
    kstart(a, K)
    a("""
    s_cmp_ge_u32 s2, 256
    s_cbranch_scc1 L_p_end
    s_load_dwordx2 s[20:21], s[0:1], 16
    s_load_dwordx2 s[22:23], s[0:1], 40
    s_load_dwordx2 s[24:25], s[0:1], 48
    s_load_dwordx2 s[28:29], s[0:1], 64
    v_lshrrev_b32 v1, 6, v0
    v_and_b32 v0, 63, v0
    s_and_b32 s30, s2, 7
    s_lshr_b32 s31, s2, 3
    v_readfirstlane_b32 s16, v1
    s_lshr_b32 s32, s30, 2        ; part
    s_and_b32 s33, s30, 3
    s_lshl_b32 s33, s33, 2
    s_and_b32 s34, s31, 3
    s_add_u32 s33, s33, s34       ; mt (0..15)
    s_lshr_b32 s34, s31, 2        ; nt (0..7)
    s_waitcnt lgkmcnt(0)
    s_cmp_eq_u32 s32, 0
    s_cselect_b32 s20, s20, s22
    s_cselect_b32 s21, s21, s23
    """)
    srd(a, 4, "s20", "s21", 1024 * 1024 * 2)
    srd(a, 8, "s24", "s25", 2048 * 2048 * 2)
    srd(a, 12, "s28", "s29", WS_SIZE)
    a("""
    s_cmp_ge_u32 s16, 4
    s_cbranch_scc1 L_p_loader
    """)
    a("""
    s_lshr_b32 s36, s16, 1
    s_and_b32 s37, s16, 1
    v_lshlrev_b32 v1, 4, v0
    s_lshl_b32 s38, s36, 13
    v_add_u32 v1, s38, v1
    v_lshrrev_b32 v7, 5, v0       ; h
    v_bfe_u32 v6, v0, 2, 2        ; r = i>>2
    v_lshl_add_u32 v5, v7, 2, v6  ; row = 4h + r
    v_lshlrev_b32 v5, 8, v5       ; *256
    v_and_b32 v4, 1, v0           ; h' = c&1
    v_lshlrev_b32 v4, 2, v4       ; 4h'
    v_bfe_u32 v7, v0, 4, 1        ; G  (g>>1)
    v_or_b32 v4, v4, v7
    s_lshl_b32 s38, s37, 3
    v_or_b32 v4, s38, v4          ; u for b=0
    v_and_b32 v7, 1, v6
    v_lshlrev_b32 v7, 1, v7
    v_xor_b32 v4, v4, v7
    v_lshrrev_b32 v7, 1, v6
    v_lshlrev_b32 v7, 3, v7
    v_xor_b32 v4, v4, v7
    v_bfe_u32 v7, v0, 1, 1        ; g&1
    v_lshl_add_u32 v5, v7, 3, v5
    v_add_u32 v5, 16384, v5
    v_lshl_add_u32 v2, v4, 4, v5
    v_xor_b32 v4, 2, v4
    v_lshl_add_u32 v3, v4, 4, v5
    """)
    ACC = 72
    st = Stamper(a, 6, 2)
    st(0)
    for r in range(ACC, ACC + 64): a(f"v_mov_b32 v{r}, 0")
    F = [8, 40]
    def reads(fs, u):
        r = []
        for kk in range(2):
            ks = 2 * u + kk
            b = F[fs] + 16 * kk
            r.append(f"ds_read_b128 {vr(b,4)}, v1 offset:{ks*1024}")
            r.append(f"ds_read_b64_tr_b16 {vr(b+8,2)}, v2 offset:{ks*4096}")
            r.append(f"ds_read_b64_tr_b16 {vr(b+10,2)}, v2 offset:{ks*4096+2048}")
            r.append(f"ds_read_b64_tr_b16 {vr(b+12,2)}, v3 offset:{ks*4096}")
            r.append(f"ds_read_b64_tr_b16 {vr(b+14,2)}, v3 offset:{ks*4096+2048}")
            r.append(f"ds_read_b128 {vr(b+4,4)}, v1 offset:{4096+ks*1024}")
        return r
    def mfmas(fs):
        m = []
        for kk in range(2):
            b = F[fs] + 16 * kk
            for tt in range(2):
                for bb in range(2):
                    m.append(mfma(ACC + (tt * 2 + bb) * 16, b + 8 + 4 * bb, b + 4 * tt))
        return m
    a("s_mov_b32 s40, 0\ns_mov_b32 s49, 0x8000\ns_barrier")
    st(1)
    for r in reads(0, 0): a(r)
    a(".p2align 6\nL_p_loop:")
    for u in range(2):
        rd = reads(u ^ 1, u ^ 1); mm = mfmas(u)
        a("s_waitcnt lgkmcnt(0)")
        if u == 1:
            a("s_barrier")
            a(mm[0])
            a(f"""
            s_add_u32 s40, s40, 1
            s_and_b32 s41, s40, {PJ_NB-1}
            s_cmp_eq_u32 s41, 0
            s_cselect_b32 s43, {(-(PJ_NB-1)*32768) & 0xffffffff:#x}, s49
            v_add_u32 v1, s43, v1
            v_add_u32 v2, s43, v2
            v_add_u32 v3, s43, v3
            """)
        else:
            a(mm[0])
        a(rd[0]); a(rd[1]); a(rd[2])
        for i in range(1, 8):
            a(mm[i])
            if i < 4:
                a(rd[3 * i]); a(rd[3 * i + 1]); a(rd[3 * i + 2])
    a("s_cmp_lt_u32 s40, 16\ns_cbranch_scc1 L_p_loop")
    st(2)
    SC = OPT["p_sc"]
    a("""
    s_waitcnt lgkmcnt(0)
    s_lshl_b32 s46, s16, 13
    v_and_b32 v1, 31, v0          ; t
    v_lshrrev_b32 v2, 5, v0       ; h'
    v_lshlrev_b32 v2, 2, v2
    v_and_b32 v3, 7, v0
    v_xor_b32 v2, v2, v3          ; (4h') ^ (t&7)
    v_lshlrev_b32 v1, 7, v1
    v_add_u32 v1, s46, v1
    v_lshl_add_u32 v8, v2, 4, v1
    v_xor_b32 v9, 16, v8
    v_xor_b32 v10, 32, v8
    v_xor_b32 v11, 48, v8
    v_lshlrev_b32 v12, 4, v0
    v_add_u32 v12, s46, v12
    s_lshl_b32 s44, s33, 7
    s_lshl_b32 s45, s36, 6
    s_add_u32 s44, s44, s45
    v_lshrrev_b32 v1, 3, v0
    v_xor_b32 v2, v1, v3          ; unit
    v_add_u32 v1, s44, v1
    v_lshlrev_b32 v1, 12, v1
    v_lshl_add_u32 v1, v2, 4, v1
    s_lshl_b32 s44, s32, 11
    s_lshl_b32 s45, s34, 8
    s_add_u32 s44, s44, s45
    s_lshl_b32 s45, s37, 7
    s_add_u32 s44, s44, s45
    """)
    for tt in range(2):
        for bb in range(2):
            d = ACC + (tt * 2 + bb) * 16
            for r in range(8): a(f"v_cvt_pk_bf16_f32 v{d+r}, v{d+2*r}, v{d+2*r+1}")
            a(f"ds_write_b128 v{8+2*bb}, {vr(d,4)} offset:{tt*4096}")
            a(f"ds_write_b128 v{9+2*bb}, {vr(d+4,4)} offset:{tt*4096}")
        a("s_waitcnt lgkmcnt(0)")
        for i in range(4): a(f"ds_read_b128 {vr(16+16*tt+4*i,4)}, v12 offset:{tt*4096+i*1024}")
    for i in range(8):
        a(f"s_waitcnt lgkmcnt({max(0, 7-i) if i >= 4 else 4})")
        a(f"buffer_store_dwordx4 {vr(16+4*i,4)}, v1, s[8:11], s44 offen {SC}")
        a("s_add_u32 s44, s44, 0x8000")
    st(3)
    if STAMP: a("s_waitcnt vmcnt(0)")
    st(4)
    st.flush(1)
    a("s_endpgm")
    a("L_p_loader:")
    a(f"""
    s_sub_u32 s36, s16, 4
    s_lshl_b32 s37, s33, 2
    s_add_u32 s37, s37, s36
    s_lshl_b32 s37, s37, 16
    s_lshl_b32 s38, s32, 22
    s_add_u32 s37, s37, s38
    s_add_u32 s37, s37, {WS_O}
    v_lshlrev_b32 v1, 4, v0
    v_add_u32 v1, s37, v1         ; O voffset
    v_lshrrev_b32 v2, 4, v0       ; r
    v_and_b32 v3, 15, v0          ; p
    v_and_b32 v4, 1, v2
    v_lshlrev_b32 v4, 1, v4
    v_xor_b32 v3, v3, v4
    v_lshrrev_b32 v4, 1, v2
    v_lshlrev_b32 v4, 3, v4
    v_xor_b32 v3, v3, v4          ; u
    s_lshl_b32 s38, s36, 4
    v_add_u32 v2, s38, v2
    v_lshlrev_b32 v2, 11, v2      ; row*2048
    v_lshl_add_u32 v2, v3, 4, v2
    s_lshl_b32 s38, s34, 8
    v_add_u32 v2, s38, v2
    s_lshl_b32 s40, s36, 12       ; lw*4096
    """)
    for j in range(4): a(f"v_add_u32 v{8+j}, {j*4*2048 - j*1024}, v2")
    def ld(s):
        base = (s % PJ_NB) * 32768
        a(f"s_mov_b32 s42, {s*4096}\ns_mov_b32 s43, {s*64*2048}")
        a(f"s_add_u32 m0, s40, {base}\ns_nop 0")
        for j in range(4): a(f"buffer_load_dwordx4 v1, s[12:15], s42 offen offset:{j*1024} lds")
        a(f"s_add_u32 m0, s40, {base+16384}\ns_nop 0")
        for j in range(4): a(f"buffer_load_dwordx4 v{8+j}, s[4:7], s43 offen offset:{j*1024} lds")
    for s in range(PJ_NB): ld(s)
    issued = PJ_NB
    for s in range(16):
        a(f"s_waitcnt vmcnt({(issued - 1 - s) * 8})\ns_barrier")
        if s >= 1 and issued < 16:
            ld(issued); issued += 1
    a("L_p_end:\ns_endpgm")
    return kdesc(K, 136)

def main():
    global STAMP
    if "--stamp" in sys.argv:
        STAMP = True; sys.argv.remove("--stamp")
    for arg in list(sys.argv[1:]):
        if "=" in arg:
            k, v = arg.split("=", 1); OPT[k] = type(OPT[k])(v.replace("+", " ")); sys.argv.remove(arg)
    a = Asm()
    hdr = open("cdna_kernels/%s.s.ref" % NAME).read().split("\n")
    head = [l for l in hdr if l.startswith(";") and "@launch" not in l and "Override" not in l and "grid=ceil" not in l]
    txt = "\n".join(head) + "\n"
    txt += f"; @launch kernel=qkv_kernel grid=(256,1,1) block=(512,1,1) lds={G1_LDS}\n"
    txt += f"; @launch kernel=attn_kernel grid=(256,1,1) block=(512,1,1) lds={AT_LDS}\n"
    txt += f"; @launch kernel=proj_kernel grid=(256,1,1) block=(512,1,1) lds={PJ_LDS}\n"
    txt += '.amdgcn_target "amdgcn-amd-amdhsa--gfx950"\n.text\n'
    d = [gen_qkv(a), gen_attn(a), gen_proj(a)]
    txt += a.text()
    txt += '.section .rodata,"a"\n' + "".join(d)
    out = sys.argv[1] if len(sys.argv) > 1 else OUT
    open(out, "w").write(txt)
    print("wrote", out, len(txt))

if __name__ == "__main__":
    main()
```

```python
import sys, math, struct

NAME = "concat_heads__sliding_block__mha_block__prompt"
OUT = "cdna_kernels/%s.s" % NAME

def f32(x): return struct.unpack("<I", struct.pack("<f", x))[0]

class Asm:
    def __init__(self): self.l = []
    def __call__(self, s):
        for line in s.strip("\n").split("\n"):
            line = line.strip()
            if not line: continue
            self.l.append(line if line.endswith(":") or line.startswith(".") else "    " + line)
    def text(self): return "\n".join(self.l) + "\n"

def vr(a, n): return "v[%d:%d]" % (a, a + n - 1)
def sr(a, n): return "s[%d:%d]" % (a, a + n - 1)

MB = 1 << 20
OPT = dict(g1=2, ws_off=0, q_ld="", q_sc="sc1", a_sc="sc1", p_sc="sc1", q_touch=1, a_delay=1)
WS_Q, WS_KV, WS_O, WS_SIZE = 0, 8 * MB, 24 * MB, 34 * MB

def srd(a, s, lo, hi, size):
    if lo == "s28" and OPT["ws_off"]:
        a(f"s_add_u32 s28, s28, {OPT['ws_off']*MB:#x}\ns_addc_u32 s29, s29, 0")
    a(f"""
    s_mov_b32 s{s}, {lo}
    s_mov_b32 s{s+1}, {hi}
    s_mov_b32 s{s+2}, {size:#x}
    s_mov_b32 s{s+3}, 0x00020000
    """)

def kstart(a, name):
    a(f"""
    .globl {name}
    .p2align 8
    .type {name},@function
    {name}:
    """)

def kdesc(name, nfv, nsgpr=102):
    acc = (nfv + 3) // 4 * 4
    return f"""
.p2align 6
.amdhsa_kernel {name}
  .amdhsa_next_free_vgpr {nfv}
  .amdhsa_next_free_sgpr {nsgpr}
  .amdhsa_accum_offset {acc}
  .amdhsa_group_segment_fixed_size 0
  .amdhsa_kernarg_size 72
  .amdhsa_user_sgpr_count 2
  .amdhsa_user_sgpr_kernarg_segment_ptr 1
  .amdhsa_system_sgpr_workgroup_id_x 1
.end_amdhsa_kernel
"""

STAMP = False
class Stamper:
    def __init__(self, a, vreg, kidx): self.a, self.v, self.k = a, vreg, kidx
    def __call__(self, n):
        if not STAMP: return
        self.a(f"""
        s_memtime s[96:97]
        s_memrealtime s[98:99]
        s_waitcnt lgkmcnt(0)
        v_writelane_b32 v{self.v}, s96, {n}
        v_writelane_b32 v{self.v}, s98, {32+n}
        """)
    def dyn(self, sidx, mul, add):
        if not STAMP: return
        self.a(f"""
        s_memtime s[96:97]
        s_mul_i32 s98, {sidx}, {mul}
        s_add_u32 m0, s98, {add}
        s_waitcnt lgkmcnt(0)
        v_writelane_b32 v{self.v}, s96, m0
        """)
    def flush(self, tmp, lane="v0"):
        if not STAMP: return
        self.a(f"""
        s_lshl_b32 s96, s2, 3
        s_add_u32 s96, s96, s16
        s_lshl_b32 s96, s96, 8
        s_add_u32 s96, s96, {WS_SIZE - 2*MB + self.k * 512 * 1024}
        v_lshlrev_b32 v{tmp}, 2, {lane}
        buffer_store_dword v{self.v}, v{tmp}, s[12:15], s96 offen
        """)

def mfma(d, A, B, C=None):
    c = vr(d, 16) if C is None else (C if isinstance(C, str) else vr(C, 16))
    return f"v_mfma_f32_32x32x16_bf16 {vr(d,16)}, {vr(A,4)}, {vr(B,4)}, {c}"

G1_XB = [0, 32768, 65536]
G1_WB = [98304, 122880]
G1_LDS = 147456

def gen_qkv(a):
    K = "qkv_kernel"
    kstart(a, K)
    a("""
    s_cmp_ge_u32 s2, 256
    s_cbranch_scc1 L_q_end
    s_load_dwordx4 s[20:23], s[0:1], 0
    s_load_dwordx2 s[24:25], s[0:1], 24
    s_load_dwordx2 s[26:27], s[0:1], 32
    s_load_dwordx2 s[28:29], s[0:1], 64
    v_lshrrev_b32 v1, 6, v0
    v_and_b32 v0, 63, v0
    s_and_b32 s30, s2, 7          ; xcd
    s_lshr_b32 s31, s2, 3         ; idx
    v_readfirstlane_b32 s16, v1
    s_lshr_b32 s32, s30, 2        ; part
    s_bfe_u32 s33, s30, 0x10001   ; (xcd>>1)&1
    s_lshl_b32 s33, s33, 2
    s_and_b32 s34, s31, 3
    s_add_u32 s33, s33, s34       ; mt
    s_and_b32 s34, s30, 1
    s_lshl_b32 s34, s34, 3
    s_lshr_b32 s35, s31, 2
    s_add_u32 s34, s34, s35       ; nt
    s_waitcnt lgkmcnt(0)
    s_cmp_eq_u32 s32, 0
    s_cselect_b32 s20, s20, s24
    s_cselect_b32 s21, s21, s25
    s_cselect_b32 s22, s22, s26
    s_cselect_b32 s23, s23, s27
    """)
    srd(a, 4, "s20", "s21", 2048 * 1024 * 2)
    srd(a, 8, "s22", "s23", 1024 * 3072 * 2)
    srd(a, 12, "s28", "s29", WS_SIZE)
    st = Stamper(a, 7, 0)
    a("""
    s_cmp_ge_u32 s16, 4
    s_cbranch_scc1 L_q_loader
    """)
    a("""
    s_lshr_b32 s36, s16, 1        ; wm
    s_and_b32 s37, s16, 1         ; wh
    v_and_b32 v6, 31, v0          ; t
    v_lshrrev_b32 v7, 5, v0       ; h
    v_bfe_u32 v5, v0, 1, 3        ; f = (t>>1)&7
    v_lshlrev_b32 v6, 7, v6       ; t*128
    s_lshl_b32 s38, s36, 14
    v_add_u32 v6, s38, v6         ; + wm*16384
    """)
    for ks in range(4):
        a(f"""
        v_or_b32 v{1+ks}, {2*ks}, v7
        v_xor_b32 v{1+ks}, v{1+ks}, v5
        v_lshl_add_u32 v{1+ks}, v{1+ks}, 4, v6
        """)
    a(f"""
    v_bfe_u32 v6, v0, 2, 2        ; i>>2
    v_lshl_add_u32 v6, v7, 3, v6  ; 8h + (i>>2)
    v_lshlrev_b32 v6, 7, v6
    v_bfe_u32 v5, v0, 3, 1
    v_xor_b32 v5, s37, v5
    v_lshl_add_u32 v6, v5, 6, v6
    v_bfe_u32 v5, v0, 4, 1
    v_lshl_add_u32 v6, v5, 5, v6
    v_and_b32 v5, 3, v0
    v_lshl_add_u32 v5, v5, 3, v6
    v_add_u32 v5, {G1_WB[0]}, v5
    """)
    st(0)
    for r in range(64, 256): a(f"v_mov_b32 v{r}, 0")
    F = [8, 36]
    def reads(fs, ks):
        r = []
        for tt in range(4):
            r.append(f"ds_read_b128 {vr(F[fs]+4*tt,4)}, v{1+ks} offset:{tt*4096}")
        for sec in range(3):
            for half in range(2):
                r.append(f"ds_read_b64_tr_b16 {vr(F[fs]+16+4*sec+2*half,2)}, v5 offset:{sec*8192+ks*2048+half*512}")
        return [r[0], r[4], r[5], r[6], r[7], r[8], r[9], r[1], r[2], r[3]]
    def mfmas(fs):
        m = []
        for tt in range(4):
            for sec in range(3):
                d = 64 + (tt * 3 + sec) * 16
                x, w = F[fs] + 4 * tt, F[fs] + 16 + 4 * sec
                m.append(mfma(d, w, x) if sec < 2 else mfma(d, x, w))
        return m
    a("""
    s_mov_b32 s40, 0
    s_mov_b32 s41, 0              ; x buffer index (s%3)
    s_mov_b32 s42, 24576          ; w delta
    s_mov_b32 s49, 0x8000
    s_barrier
    """)
    st(1)
    for r in reads(0, 0): a(r)
    a(".p2align 6")
    a("L_q_loop:")
    for ks in range(4):
        cur, nxt = ks & 1, (ks + 1) & 1
        rd = reads(nxt, (ks + 1) & 3)
        mm = mfmas(cur)
        a("s_waitcnt lgkmcnt(0)")
        if ks == 3:
            a("s_barrier")
            a(mm[0])
            a("""
            s_add_u32 s41, s41, 1
            s_cmp_eq_u32 s41, 3
            s_cselect_b32 s43, 0xffff0000, s49
            s_cselect_b32 s41, 0, s41
            v_add_u32 v1, s43, v1
            v_add_u32 v5, s42, v5
            """)
            a(rd[0]); a(rd[1])
            a(mm[1])
            a("""
            v_add_u32 v2, s43, v2
            v_add_u32 v3, s43, v3
            v_add_u32 v4, s43, v4
            s_sub_u32 s42, 0, s42
            """)
            a(rd[2]); a(rd[3])
            i0 = 2
        else:
            i0 = 0
        for i in range(i0, 12):
            a(mm[i])
            if i < 5:
                a(rd[2 * i]); a(rd[2 * i + 1])
            if ks == 3 and i == 10:
                a("s_add_u32 s40, s40, 1\ns_cmp_lt_u32 s40, 16")
    a("s_cbranch_scc1 L_q_loop")
    st(2)
    c = math.log2(math.e) / math.sqrt(32.0)
    SC = OPT["q_sc"]
    a(f"""
    s_waitcnt lgkmcnt(0)
    s_lshl_b32 s44, s34, 1
    s_add_u32 s44, s44, s37       ; head
    s_lshl_b32 s44, s44, 6
    s_lshl_b32 s45, s33, 3
    s_add_u32 s44, s44, s45
    s_lshl_b32 s45, s36, 2
    s_add_u32 s44, s44, s45
    s_lshl_b32 s46, s44, 11
    s_lshl_b32 s45, s32, 22
    s_add_u32 s46, s46, s45       ; Q base
    s_lshl_b32 s47, s44, 12
    s_lshl_b32 s45, s32, 23
    s_add_u32 s47, s47, s45
    s_add_u32 s47, s47, {WS_KV}
    s_mov_b32 s48, {f32(c):#x}
    v_lshlrev_b32 v1, 4, v0       ; lane*16
    v_and_b32 v2, 0x33, v0
    v_bfe_u32 v3, v0, 2, 1
    v_lshl_or_b32 v2, v3, 3, v2
    v_bfe_u32 v3, v0, 3, 1
    v_lshl_or_b32 v2, v3, 2, v2
    v_lshlrev_b32 v2, 4, v2       ; swap23(lane)*16
    """)
    for tt in range(4):
        for sec in range(3):
            d = 64 + (tt * 3 + sec) * 16
            if sec == 0:
                for r in range(16): a(f"v_mul_f32 v{d+r}, s48, v{d+r}")
            for r in range(8): a(f"v_cvt_pk_bf16_f32 v{d+r}, v{d+2*r}, v{d+2*r+1}")
            if sec == 0:
                a(f"buffer_store_dwordx4 {vr(d,4)}, v1, s[12:15], s46 offen {SC}")
                a(f"buffer_store_dwordx4 {vr(d+4,4)}, v1, s[12:15], s46 offen offset:1024 {SC}")
            elif sec == 1:
                a(f"buffer_store_dwordx4 {vr(d,4)}, v2, s[12:15], s47 offen {SC}")
                a(f"buffer_store_dwordx4 {vr(d+4,4)}, v2, s[12:15], s47 offen offset:1024 {SC}")
            else:
                a(f"buffer_store_dwordx4 {vr(d,4)}, v1, s[12:15], s47 offen offset:2048 {SC}")
                a(f"buffer_store_dwordx4 {vr(d+4,4)}, v1, s[12:15], s47 offen offset:3072 {SC}")
        a("s_add_u32 s46, s46, 2048\ns_add_u32 s47, s47, 4096")
    st(3)
    if STAMP: a("s_waitcnt vmcnt(0)")
    st(4)
    st.flush(1)
    a("s_endpgm")
    a("L_q_loader:")
    a("""
    s_sub_u32 s36, s16, 4         ; lw
    v_lshrrev_b32 v1, 3, v0       ; l>>3
    v_and_b32 v2, 7, v0           ; l&7
    v_lshrrev_b32 v3, 4, v0       ; l>>4
    s_lshl_b32 s37, s33, 8
    s_lshl_b32 s38, s36, 6
    s_add_u32 s37, s37, s38
    v_add_u32 v4, s37, v1
    v_lshlrev_b32 v4, 11, v4      ; row*2048
    v_xor_b32 v5, v2, v3
    v_xor_b32 v6, 4, v5
    v_lshl_add_u32 v5, v5, 4, v4
    v_lshl_add_u32 v6, v6, 4, v4
    """)
    for n in range(8):
        a(f"v_add_u32 v{8+n}, {n*16384}, v{5 + (n & 1)}")
    a("""
    s_lshl_b32 s38, s36, 4
    v_add_u32 v4, s38, v1
    s_mov_b32 s39, 6144
    v_mul_lo_u32 v4, v4, s39
    v_and_b32 v3, 1, v3
    v_lshlrev_b32 v3, 2, v3
    v_xor_b32 v5, v2, v3
    v_lshl_add_u32 v4, v5, 4, v4
    s_lshl_b32 s38, s34, 7        ; nt*128
    v_add_u32 v4, s38, v4
    """)
    for sec in range(3):
        for jj in range(2):
            a(f"v_add_u32 v{16+sec*2+jj}, {sec*2048 + jj*8*6144}, v4")
    a("""
    s_lshl_b32 s40, s36, 13
    s_lshl_b32 s41, s36, 11
    """)
    def ldx(s):
        a(f"s_mov_b32 s42, {s*128}")
        for n in range(8):
            a(f"s_add_u32 m0, s40, {G1_XB[s%3] + n*1024}\ns_nop 0")
            a(f"buffer_load_dwordx4 v{8+n}, s[4:7], s42 offen lds")
    def ldw(s):
        a(f"s_mov_b32 s43, {s*64*6144}")
        for sec in range(3):
            for jj in range(2):
                a(f"s_add_u32 m0, s41, {G1_WB[s%2] + sec*8192 + jj*1024}\ns_nop 0")
                a(f"buffer_load_dwordx4 v{16+sec*2+jj}, s[8:11], s43 offen lds")
    TCH = OPT["q_touch"]
    ldx(0); ldw(0); ldx(1); ldw(1); ldx(2)
    if TCH:
        a(f"""
        v_bfe_u32 v24, v0, 4, 1
        v_and_b32 v25, 15, v0
        v_lshl_add_u32 v24, v24, 6, v25   ; 64*((l>>4)&1) + (l&15)
        s_and_b32 s50, s33, 3
        s_lshl_b32 s50, s50, 4
        v_add_u32 v24, s50, v24           ; + 16*mtl
        v_mul_lo_u32 v24, v24, s39
        s_lshl_b32 s50, s36, 11
        s_add_u32 s50, s50, s38
        v_add_u32 v24, s50, v24
        v_and_b32 v25, 31, v0
        s_and_b32 s50, s34, 7
        s_lshl_b32 s50, s50, 5
        s_lshl_b32 s51, s33, 8
        s_add_u32 s50, s50, s51
        v_add_u32 v25, s50, v25           ; row
        v_lshlrev_b32 v25, 11, v25
        v_lshrrev_b32 v26, 5, v0
        v_lshl_add_u32 v25, v26, 7, v25
        s_cmp_eq_u32 s36, 3
        s_cselect_b32 s52, s4, s8
        s_cselect_b32 s53, s5, s9
        s_cselect_b32 s54, s6, s10
        s_mov_b32 s55, 0x00020000
        s_mov_b32 s51, {128*6144}
        s_cselect_b32 s51, 256, s51
        s_cselect_b64 vcc, -1, 0
        s_mov_b32 s50, s51
        v_cndmask_b32 v24, v24, v25, vcc
        """)
    def touch():
        a("buffer_load_dword v27, v24, s[52:55], s50 offen\ns_add_u32 s50, s50, s51")
    if TCH: touch()
    a(f"s_waitcnt vmcnt({22+TCH})\ns_barrier")
    a(f"s_waitcnt vmcnt({8+TCH})\ns_barrier")
    for s in range(1, 15):
        ldw(s + 1)
        if s + 2 < 16:
            ldx(s + 2)
            t = 1 if (TCH and s <= 6) else 0
            if t: touch()
            a(f"s_waitcnt vmcnt({8+t})\ns_barrier")
        else:
            a("s_waitcnt vmcnt(0)\ns_barrier")
    a("L_q_end:\ns_endpgm")
    return kdesc(K, 256)

G2_SLOT = 40960
G2_NB = 4
G2_LDS = G2_SLOT * G2_NB

def mfma16(d, A, B):
    return f"v_mfma_f32_16x16x32_bf16 {vr(d,4)}, {vr(A,4)}, {vr(B,4)}, {vr(d,4)}"

def gen_qkv2(a):
    K = "qkv_kernel"
    kstart(a, K)
    a("""
    s_cmp_ge_u32 s2, 256
    s_cbranch_scc1 L_q_end
    s_load_dwordx4 s[20:23], s[0:1], 0
    s_load_dwordx2 s[24:25], s[0:1], 24
    s_load_dwordx2 s[26:27], s[0:1], 32
    s_load_dwordx2 s[28:29], s[0:1], 64
    v_lshrrev_b32 v1, 6, v0
    v_and_b32 v0, 63, v0
    s_and_b32 s30, s2, 7          ; xcd
    s_lshr_b32 s31, s2, 3         ; idx
    v_readfirstlane_b32 s16, v1
    s_and_b32 s33, s30, 1
    s_lshl_b32 s33, s33, 3
    s_and_b32 s34, s31, 7
    s_add_u32 s33, s33, s34       ; mt (0..15)
    s_lshr_b32 s34, s30, 1
    s_lshl_b32 s34, s34, 2
    s_lshr_b32 s35, s31, 3
    s_add_u32 s34, s34, s35       ; nt (0..15)
    s_cmp_lt_u32 s16, 4
    s_cbranch_scc1 L_q_compute
    """)
    a("""
    s_sub_u32 s36, s16, 4         ; lw
    v_lshrrev_b32 v1, 3, v0       ; l>>3
    v_and_b32 v2, 7, v0           ; l&7
    v_lshrrev_b32 v3, 4, v0       ; l>>4
    s_lshl_b32 s37, s33, 7
    s_lshl_b32 s38, s36, 5
    s_add_u32 s37, s37, s38
    v_add_u32 v4, s37, v1
    v_lshlrev_b32 v4, 11, v4      ; row*2048
    v_xor_b32 v5, v2, v3
    v_xor_b32 v6, 4, v5
    v_lshl_add_u32 v8, v5, 4, v4
    v_lshl_add_u32 v6, v6, 4, v4
    """)
    for n in range(1, 4):
        a(f"v_add_u32 v{8+n}, {n*16384 - n*1024}, v{6 if n & 1 else 8}")
    a("""
    s_lshl_b32 s38, s36, 4
    v_add_u32 v4, s38, v1
    s_mov_b32 s39, 6144
    v_mul_lo_u32 v4, v4, s39
    v_and_b32 v3, 1, v3
    v_lshlrev_b32 v3, 1, v3
    v_xor_b32 v5, v2, v3          ; jj = 0
    v_xor_b32 v6, 4, v5           ; jj = 1
    s_lshl_b32 s38, s34, 7        ; nt*128
    v_add_u32 v4, s38, v4
    v_lshl_add_u32 v5, v5, 4, v4
    v_lshl_add_u32 v6, v6, 4, v4
    """)
    for sec in range(3):
        for jj in range(2):
            p = sec * 2 + jj
            a(f"v_add_u32 v{16+p}, {sec*2048 + jj*8*6144 - (p % 3)*1024}, v{5+jj}")
    a("""
    s_lshl_b32 s40, s36, 12
    s_mul_i32 s41, s36, 6144
    s_add_u32 s41, s41, 16384     ; W lds
    s_waitcnt lgkmcnt(0)
    """)
    srd(a, 4, "s24", "s25", 2048 * 1024 * 2)
    srd(a, 8, "s26", "s27", 1024 * 3072 * 2)
    def ld(s):
        base = (s % G2_NB) * G2_SLOT
        if s == 16:
            a("s_mov_b32 s4, s20\ns_mov_b32 s5, s21\ns_mov_b32 s8, s22\ns_mov_b32 s9, s23")
        k = s % 16
        a(f"s_add_u32 m0, s40, {base}\ns_mov_b32 s42, {k*128}")
        for n in range(4): a(f"buffer_load_dwordx4 v{8+n}, s[4:7], s42 offen offset:{n*1024} {OPT['q_ld']} lds")
        a(f"s_add_u32 m0, s41, {base}\ns_mov_b32 s43, {k*64*6144}")
        for p in range(3): a(f"buffer_load_dwordx4 v{16+p}, s[8:11], s43 offen offset:{p*1024} {OPT['q_ld']} lds")
        a(f"s_add_u32 m0, s41, {base+3072}\ns_nop 0")
        for p in range(3): a(f"buffer_load_dwordx4 v{19+p}, s[8:11], s43 offen offset:{p*1024} {OPT['q_ld']} lds")
    for s in range(G2_NB): ld(s)
    TCH = OPT["q_touch"]
    if TCH:
        a(f"""
        v_bfe_u32 v24, v0, 3, 1
        v_lshl_add_u32 v24, v24, 6, v2    ; 64*((l>>3)&1) + (l&7)
        s_and_b32 s50, s33, 7
        s_lshl_b32 s50, s50, 3
        v_add_u32 v24, s50, v24           ; + 8*(mt&7)
        v_mul_lo_u32 v24, v24, s39
        s_lshl_b32 s50, s36, 11
        s_add_u32 s50, s50, s38
        v_add_u32 v24, s50, v24
        v_and_b32 v25, 31, v0
        s_and_b32 s50, s34, 3
        s_lshl_b32 s50, s50, 5
        s_lshl_b32 s51, s33, 7
        s_add_u32 s50, s50, s51
        v_add_u32 v25, s50, v25           ; row
        v_lshlrev_b32 v25, 11, v25
        v_lshrrev_b32 v26, 5, v0
        v_lshl_add_u32 v25, v26, 7, v25
        s_cmp_eq_u32 s36, 3
        s_cselect_b32 s52, s24, s26
        s_cselect_b32 s53, s25, s27
        s_cselect_b32 s56, s20, s22
        s_cselect_b32 s57, s21, s23
        s_cselect_b32 s54, s6, s10
        s_mov_b32 s55, 0x00020000
        s_mov_b32 s51, {128*6144}
        s_cselect_b32 s51, 256, s51
        s_cselect_b64 vcc, -1, 0
        s_lshl_b32 s50, s51, 1
        v_cndmask_b32 v24, v24, v25, vcc
        """)
    tstate = [4]
    def touch():
        if not TCH or tstate[0] >= 32: return 0
        if tstate[0] == 16: a("s_mov_b32 s52, s56\ns_mov_b32 s53, s57\ns_mov_b32 s50, 0")
        a("buffer_load_dword v27, v24, s[52:55], s50 offen\ns_add_u32 s50, s50, s51")
        tstate[0] += 2
        return 1
    q = [s for s in range(G2_NB) for _ in range(10)]
    if touch(): q.append(-1)
    issued = G2_NB
    for s in range(32):
        last = max(i for i, x in enumerate(q) if x == s)
        a(f"s_waitcnt vmcnt({len(q) - 1 - last})\ns_barrier")
        q = q[last + 1:]
        if s >= 1 and issued < 32:
            ld(issued); q += [issued] * 10; issued += 1
        if s >= 1 and touch(): q.append(-1)
    a("L_q_end:\ns_endpgm")
    a("L_q_compute:")
    st = Stamper(a, 7, 0)
    a("""
    s_lshr_b32 s36, s16, 1        ; wm
    s_and_b32 s37, s16, 1         ; wh
    v_and_b32 v6, 15, v0          ; t
    v_lshrrev_b32 v7, 4, v0       ; g
    v_bfe_u32 v5, v0, 1, 3        ; f = (t>>1)&7
    v_lshlrev_b32 v6, 7, v6       ; t*128
    s_lshl_b32 s38, s36, 13
    v_add_u32 v6, s38, v6         ; + wm*8192
    v_xor_b32 v1, v7, v5
    v_xor_b32 v2, 4, v1
    v_lshl_add_u32 v1, v1, 4, v6
    v_lshl_add_u32 v2, v2, 4, v6
    v_lshrrev_b32 v6, 5, v0       ; g>>1
    s_mov_b32 s39, 6144
    v_mul_lo_u32 v6, v6, s39
    v_and_b32 v7, 1, v7           ; g&1
    v_bfe_u32 v5, v0, 2, 2        ; r = i>>2
    v_lshl_add_u32 v5, v7, 3, v5  ; 8(g&1) + r
    v_lshl_add_u32 v6, v5, 7, v6
    v_and_b32 v5, 3, v0
    v_lshl_add_u32 v6, v5, 3, v6  ; + (i&3)*8
    v_add_u32 v6, 16384, v6
    v_bfe_u32 v5, v0, 3, 1        ; (r>>1)&1
    v_lshl_or_b32 v5, v7, 1, v5   ; swz
    s_lshl_b32 s38, s37, 1
    v_xor_b32 v5, s38, v5
    v_lshl_add_u32 v3, v5, 5, v6
    v_xor_b32 v5, 1, v5
    v_lshl_add_u32 v4, v5, 5, v6
    s_waitcnt lgkmcnt(0)
    """)
    srd(a, 12, "s28", "s29", WS_SIZE)
    st(0)
    for r in range(64, 256): a(f"v_mov_b32 v{r}, 0")
    XF = [8, 24]; WF = 40
    def acc(st_, t, s):
        sec, cb = s >> 1, s & 1
        b = 64 + 96 * st_
        if sec < 2: return b + ((t * 2 + sec) * 2 + cb) * 4
        return b + 64 + (((t >> 1) * 2 + cb) * 2 + (t & 1)) * 4
    def rdx(buf, t, ks): return f"ds_read_b128 {vr(XF[buf]+4*t,4)}, v{1+ks} offset:{t*2048}"
    def rdw(s, half, ks):
        sec, cb = s >> 1, s & 1
        return f"ds_read_b64_tr_b16 {vr(WF+4*s+2*half,2)}, v{3+cb} offset:{ks*12288+sec*2048+half*512}"
    c = math.log2(math.e) / math.sqrt(32.0)
    SC = OPT["q_sc"]
    def epi_ops(st_):
        ops = []
        for T in range(2):
            for tl in range(2):
                t = 2 * T + tl
                d = acc(st_, t, 0)
                ops += [f"v_mul_f32 v{d+r}, s48, v{d+r}" for r in range(8)]
                ops += [f"v_cvt_pk_bf16_f32 v{d+r}, v{d+2*r}, v{d+2*r+1}" for r in range(4)]
                ops.append(f"buffer_store_dwordx4 {vr(d,4)}, v5, s[12:15], s46 offen offset:{T*2048+tl*256} {SC}")
                d = acc(st_, t, 2)
                ops += [f"v_cvt_pk_bf16_f32 v{d+r}, v{d+2*r}, v{d+2*r+1}" for r in range(4)]
                ops.append(f"buffer_store_dwordx4 {vr(d,4)}, v5, s[12:15], s{47+2*T} offen offset:{tl*256} {SC}")
            for cb in range(2):
                d = acc(st_, 2 * T, 4 + cb)
                ops += [f"v_cvt_pk_bf16_f32 v{d+r}, v{d+2*r}, v{d+2*r+1}" for r in range(4)]
                ops.append(f"buffer_store_dwordx4 {vr(d,4)}, v5, s[12:15], s{47+2*T} offen offset:{2048+cb*256} {SC}")
        return ops
    a(f"""
    s_lshl_b32 s44, s34, 1
    s_add_u32 s44, s44, s37       ; head
    s_lshl_b32 s44, s44, 6
    s_lshl_b32 s45, s33, 2
    s_add_u32 s44, s44, s45
    s_lshl_b32 s45, s36, 1
    s_add_u32 s44, s44, s45
    s_lshl_b32 s46, s44, 11
    s_add_u32 s46, s46, {4*MB}    ; Q base (B)
    s_lshl_b32 s47, s44, 12
    s_add_u32 s47, s47, {WS_KV + 8*MB}
    s_add_u32 s49, s47, 4096
    s_mov_b32 s48, {f32(c):#x}
    v_and_b32 v5, 15, v0
    v_lshrrev_b32 v6, 4, v0
    v_lshlrev_b32 v5, 4, v5
    v_lshl_add_u32 v5, v6, 9, v5  ; g*512 + (l&15)*16
    s_mov_b32 s40, 0
    s_mov_b32 s51, {G2_SLOT}
    s_barrier
    """)
    st(1)
    for t in range(4): a(rdx(0, t, 0))
    for s in range(6):
        a(rdw(s, 0, 0)); a(rdw(s, 1, 0))
    BARPOS = 8
    def stage(st_, extra):
        for ks in range(2):
            nks = ks ^ 1
            sched = {}
            def put(i, op): sched.setdefault(i, []).append(op)
            if ks == 0:
                for s in range(6):
                    put(4 * s + 3, ("w", s, rdw(s, 0, nks))); put(min(4 * s + 4, 23), ("w", s, rdw(s, 1, nks)))
                for t in range(4): put(1 + 4 * t, ("x", t, rdx(nks, t, nks)))
            else:
                order = [("w", 0, rdw(0, 0, nks)), ("w", 0, rdw(0, 1, nks)), ("x", 0, rdx(nks, 0, nks)), ("x", 1, rdx(nks, 1, nks)),
                         ("x", 2, rdx(nks, 2, nks)), ("x", 3, rdx(nks, 3, nks))]
                for s in range(1, 6): order += [("w", s, rdw(s, 0, nks)), ("w", s, rdw(s, 1, nks))]
                pos = BARPOS + 1
                for op in order:
                    if op[0] == "w": pos = max(pos, 4 * op[1] + 3)
                    put(min(pos, 23), op); pos += 1
            for i in range(24):
                s, t = i >> 2, i & 3
                x, w = XF[ks] + 4 * t, WF + 4 * s
                a(mfma16(acc(st_, t, s), w, x) if s < 4 else mfma16(acc(st_, t, s), x, w))
                ni = i + 1
                if ni < 24: need = [("w", ni >> 2, ks), ("x", ni & 3, ks)]
                else: need = None
                for op in sched.get(i, []) if ni == 24 else []:
                    a(op[2]); LQ.append((op[0], op[1], nks))
                if ni == 24: need = [("w", 0, nks), ("x", 0, nks)]
                idx = [j for j, e in enumerate(LQ) if e in need]
                if ks == 1 and i == BARPOS:
                    a("s_waitcnt lgkmcnt(0)\ns_barrier"); LQ.clear()
                    a(f"""
                    s_add_u32 s40, s40, 1
                    s_and_b32 s41, s40, {G2_NB-1}
                    s_cmp_eq_u32 s41, 0
                    s_cselect_b32 s43, {(-(G2_NB-1)*G2_SLOT) & 0xffffffff:#x}, s51
                    v_add_u32 v3, s43, v3
                    v_add_u32 v1, s43, v1
                    """)
                elif idx:
                    n = len(LQ) - 1 - max(idx)
                    a(f"s_waitcnt lgkmcnt({n})")
                    del LQ[:max(idx) + 1]
                if ks == 1 and i == BARPOS + 1: a("v_add_u32 v4, s43, v4")
                if ks == 1 and i == BARPOS + 2: a("v_add_u32 v2, s43, v2")
                nslots = 2
                if ni < 24:
                    for op in sched.get(i, []):
                        a(op[2]); LQ.append((op[0], op[1], nks)); nslots -= 1
                else: nslots -= len(sched.get(i, []))
                if ks == 1 and BARPOS <= i <= BARPOS + 2: nslots = 0
                while extra and nslots > 0:
                    op = extra.pop(0); a(op); nslots -= (2 if op.startswith("buffer") else 1)
    global LQ
    def entry_queue():
        return [("w", 0, 0), ("w", 0, 0), ("x", 0, 0), ("x", 1, 0), ("x", 2, 0), ("x", 3, 0)] + [("w", s, 0) for s in range(1, 6) for _ in range(2)]
    a("s_waitcnt lgkmcnt(0)")
    def steady_entry():
        q = entry_queue(); return q[3:]
    a(".p2align 6\nL_q_loopB:")
    LQ = steady_entry(); stage(0, []); assert LQ == steady_entry(), LQ
    a("s_cmp_lt_u32 s40, 16\ns_cbranch_scc1 L_q_loopB")
    st(2)
    ex = ["s_nop 0"] * 10 + epi_ops(0)
    npeel = 0
    while ex:
        LQ = steady_entry(); stage(1, ex); npeel += 1
    a(".p2align 6\nL_q_loopA:")
    LQ = steady_entry(); stage(1, [])
    a("s_cmp_lt_u32 s40, 32\ns_cbranch_scc1 L_q_loopA")
    st(3)
    a(f"""
    s_sub_u32 s46, s46, {4*MB}
    s_sub_u32 s47, s47, {8*MB}
    s_sub_u32 s49, s49, {8*MB}
    s_nop 7
    """)
    for op in epi_ops(1): a(op)
    st(4)
    if STAMP: a("s_waitcnt vmcnt(0)")
    st(5)
    st.flush(1)
    a("s_endpgm")
    print("qkv2: peeled stages", npeel)
    return kdesc(K, 256)

AT_LDS = 131072
R_OFF = 64.0
T_HI = 2.0 ** 48

def upper_mask(r):
    m = 0
    for l in range(64):
        key = r + 16 * (l >> 5)
        if key > (l & 31): m |= 1 << l
    return m

def gen_attn(a):
    K = "attn_kernel"
    kstart(a, K)
    S = [16, 32]; O = 48; NM = 64; L = 80; QF = 84; KF = 92; VA = 100; VB = 104; AS = 108; IDX = 112
    VK, VKN, VLANE, T0, T1, T2 = 1, 2, 3, 4, 5, 6
    VDMA = 7; QA = 116; MK = 124
    VTCH = 9; VDMAK = 10; VKP = 11
    NINF = 0xff800000
    SC = OPT["a_sc"]
    def sm32(d, A, B): return f"v_smfmac_f32_32x32x32_bf16 {vr(d,16)}, {vr(A,4)}, {vr(B,8)}, v{IDX}"
    def sm16(d, A, B): return f"v_smfmac_f32_16x16x64_bf16 {vr(d,4)}, {vr(A,4)}, {vr(B,8)}, v{IDX}"
    a(f"""
    s_cmp_ge_u32 s2, 256
    s_cbranch_scc1 L_a_end
    s_load_dwordx2 s[28:29], s[0:1], 64
    s_load_dwordx2 s[20:21], s[0:1], 16
    s_load_dwordx2 s[22:23], s[0:1], 40
    v_lshrrev_b32 v1, 6, v0
    v_and_b32 v0, 63, v0
    s_and_b32 s30, s2, 7
    s_lshr_b32 s31, s2, 3
    v_readfirstlane_b32 s16, v1   ; wave
    s_lshl_b32 s32, s30, 2
    s_and_b32 s33, s31, 3
    s_add_u32 s32, s32, s33       ; head
    s_lshr_b32 s33, s31, 2        ; qb
    s_lshl_b32 s34, s33, 3
    s_add_u32 s34, s34, s16       ; q tile
    v_lshlrev_b32 v{VLANE}, 4, v0
    s_lshl_b32 s35, s16, 12       ; w*4096
    v_add_u32 v{VDMA}, s35, v{VLANE}
    v_and_b32 v{VKP}, 0x23, v0
    v_bfe_u32 v{T0}, v0, 3, 2
    v_lshl_or_b32 v{VKP}, v{T0}, 2, v{VKP}
    v_bfe_u32 v{T0}, v0, 2, 1
    v_lshl_or_b32 v{VKP}, v{T0}, 4, v{VKP}
    v_lshlrev_b32 v{VKP}, 4, v{VKP}
    v_add_u32 v{VDMAK}, s35, v{VKP}
    s_lshl_b32 s36, s32, 18       ; head*64*4096
    s_add_u32 s37, s36, {WS_KV + 8*MB}
    s_lshl_b32 s39, s32, 6
    s_add_u32 s39, s39, s34
    s_lshl_b32 s39, s39, 11       ; Q offset (A)
    s_add_u32 s40, s39, {4*MB}    ; Q offset (B)
    s_mov_b32 m0, s35
    s_mov_b32 s14, {WS_SIZE:#x}
    s_mov_b32 s15, 0x00020000
    s_waitcnt lgkmcnt(0)
    s_add_u32 s12, s28, {OPT['ws_off']*MB:#x}
    s_addc_u32 s13, s29, 0
    """)
    st = Stamper(a, 8, 1)
    st(0)
    def dma(sptr):
        for i in range(4):
            a(f"buffer_load_dwordx4 v{VDMAK if i < 2 else VDMA}, s[12:15], {sptr} offen offset:{i*1024} lds")
    dma("s37")
    a(f"""
    buffer_load_dwordx4 {vr(QF,4)}, v{VLANE}, s[12:15], s40 offen
    buffer_load_dwordx4 {vr(QF+4,4)}, v{VLANE}, s[12:15], s40 offen offset:1024
    s_lshl_b32 s38, s33, 15
    s_add_u32 s38, s38, s36
    s_add_u32 s38, s38, {WS_KV - 32768}
    s_lshl_b32 s41, s34, 5
    s_add_u32 s41, s41, s32
    s_lshl_b32 s41, s41, 11
    s_add_u32 s41, s41, {WS_O}    ; O offset (A)
    s_add_u32 s42, s41, {4*MB}    ; O offset (B)
    s_cmp_lt_u32 s2, 128
    s_cselect_b32 s20, s20, s22
    s_cselect_b32 s21, s21, s23
    """)
    srd(a, 4, "s20", "s21", 1024 * 1024 * 2)
    def later_loads():
        a("s_add_u32 s43, s35, 32768\ns_add_u32 s44, s37, 32768")
        for c in range(2):
            a("s_mov_b32 m0, s43\ns_nop 0")
            dma("s44")
            a("s_add_u32 s44, s44, 32768\ns_add_u32 s43, s43, 32768")
        a(f"""
        buffer_load_dwordx4 {vr(QA,4)}, v{VLANE}, s[12:15], s39 offen
        buffer_load_dwordx4 {vr(QA+4,4)}, v{VLANE}, s[12:15], s39 offen offset:1024
        s_and_b32 s50, s2, 127
        s_lshl_b32 s50, s50, 3
        s_add_u32 s50, s50, s16
        s_lshl_b32 s50, s50, 11
        v_lshlrev_b32 v{VTCH}, 5, v0
        buffer_load_dword v{VTCH}, v{VTCH}, s[4:7], s50 offen
        """)
    if not OPT["a_delay"]: later_loads()
    a(f"""
    v_mov_b32 v{IDX}, 0xdddddddd
    v_and_b32 v{T0}, 7, v0
    v_mov_b32 v{T1}, 0x3f803f80
    v_cmp_eq_u32 vcc, 0, v{T0}
    s_nop 1
    v_cndmask_b32 v{AS}, 0, v{T1}, vcc
    v_cndmask_b32 v{AS+1}, 0, v{T1}, vcc
    v_cmp_eq_u32 vcc, 4, v{T0}
    s_nop 1
    v_cndmask_b32 v{AS+2}, 0, v{T1}, vcc
    v_cndmask_b32 v{AS+3}, 0, v{T1}, vcc
    v_mov_b32 v{VK}, v{VLANE}
    v_add_u32 v{VKN}, 65536, v{VLANE}
    v_mov_b32 v{T2}, {NINF:#x}
    s_mov_b32 s46, {f32(T_HI):#x}
    s_mov_b32 s47, {f32(R_OFF):#x}
    """)
    for r in range(16):
        m = upper_mask(r)
        a(f"s_mov_b32 s{64+2*r}, {m & 0xffffffff:#x}\ns_mov_b32 s{65+2*r}, {m >> 32:#x}")

    def zero_acc():
        for r in range(16): a(f"v_mov_b32 v{O+r}, 0")
        for r in range(4): a(f"v_mov_b32 v{L+r}, 0")

    def first_tile(q, addr0, off0, addr1, off1, after_mfma=None, fix=None):
        a(f"""
        ds_read_b128 {vr(KF,4)}, v{addr0} offset:{off0}
        ds_read_b128 {vr(KF+4,4)}, v{addr0} offset:{off0+1024}
        s_waitcnt lgkmcnt(0)
        {mfma(S[0], KF, q, "0")}
        {mfma(S[0], KF+4, q+4)}
        ds_read_b128 {vr(KF,4)}, v{addr1} offset:{off1}
        ds_read_b128 {vr(KF+4,4)}, v{addr1} offset:{off1+1024}
        ds_read_b128 {vr(VA,4)}, v{addr0} offset:{off0+2048}
        """)
        if after_mfma: after_mfma()
        a("s_nop 12")
        if fix: fix()
        s = S[0]
        a(f"v_max3_f32 v{T0}, v{s}, v{s+1}, v{s+2}")
        for r in range(3, 15, 2): a(f"v_max3_f32 v{T0}, v{T0}, v{s+r}, v{s+r+1}")
        a(f"""
        v_max_f32 v{T0}, v{T0}, v{s+15}
        v_mov_b32 v{T1}, v{T0}
        s_nop 1
        v_permlane32_swap_b32 v{T0}, v{T1}
        s_nop 1
        v_max_f32 v{T0}, v{T0}, v{T1}
        v_add_f32 v{T0}, s47, v{T0}
        v_sub_f32 v{NM}, 0, v{T0}
        """)
        for r in range(1, 16): a(f"v_mov_b32 v{NM+r}, v{NM}")
        for r in range(16): a(f"v_add_f32 v{s+r}, v{NM}, v{s+r}")

    rescue_sites = []
    def tile_iter(i, q, rdVb, rdK, rdVa, first=False, cblk=NM, pre_qk=None, do_qk=True, chk=None):
        s, sp = S[i & 1], S[(i + 1) & 1]
        e = [f"v_exp_f32 v{s+r}, v{s+r}" for r in range(16)]
        a(e[0]); a(e[1])
        if not first: a(sm32(O, VB, sp + 8))
        a(rdVb)
        a(e[2]); a(e[3]); a(e[4])
        if not first: a(sm16(L, AS, sp + 8))
        a("s_waitcnt lgkmcnt(3)")
        if pre_qk: pre_qk()
        a(e[5])
        if do_qk: a(mfma(sp, KF, q, cblk))
        a("s_waitcnt lgkmcnt(2)")
        a(rdK[0])
        a(e[6]); a(e[7]); a(e[8])
        if do_qk: a(mfma(sp, KF + 4, q + 4))
        a("s_waitcnt lgkmcnt(2)")
        a(rdK[1])
        a(e[9]); a(e[10]); a(e[11])
        a(sm32(O, VA, s))
        a(rdVa)
        a(e[12]); a(e[13])
        if chk: a(f"v_cmp_lt_f32 vcc, s46, v{L}")
        a(e[14])
        a(sm16(L, AS, s))
        a("s_waitcnt lgkmcnt(3)")
        if chk:
            a(f"s_cbranch_vccnz L_resc_{chk}")
            a(f"L_back_{chk}:")
            rescue_sites.append((i & 1, chk))
        a(e[15])

    def finish(i_last, ooff, tag, slow_args):
        sp = S[i_last & 1]
        a(f"""
        s_waitcnt lgkmcnt(0)
        s_nop 1
        {sm32(O, VB, sp + 8)}
        {sm16(L, AS, sp + 8)}
        s_nop 12
        v_mul_f32 v{T0}, 0, v{L}
        """)
        for r in range(16): a(f"v_fma_f32 v{T0}, v{O+r}, 0, v{T0}")
        a(f"""
        v_rcp_f32 v{T1}, v{L}
        v_cmp_u_f32 vcc, v{T0}, v{T0}
        s_nop 1
        s_cbranch_vccz L_ok_{tag}
        {slow_args}
        s_call_b64 s[52:53], L_slow
        v_rcp_f32 v{T1}, v{L}
        s_nop 0
        L_ok_{tag}:
        """)
        for r in range(16): a(f"v_mul_f32 v{O+r}, v{T1}, v{O+r}")
        for r in range(8): a(f"v_cvt_pk_bf16_f32 v{MK+r}, v{O+2*r}, v{O+2*r+1}")
        a(f"""
        buffer_store_dwordx4 {vr(MK,4)}, v{VLANE}, s[12:15], {ooff} offen {SC}
        buffer_store_dwordx4 {vr(MK+4,4)}, v{VLANE}, s[12:15], {ooff} offen offset:1024 {SC}
        """)

    zero_acc()
    for r in range(8): a(f"v_mov_b32 v{S[1]+8+r}, 0")
    for r in range(4): a(f"v_mov_b32 v{VB+r}, 0")
    a("s_mov_b32 s45, 0")
    a(f"s_waitcnt vmcnt({0 if OPT['a_delay'] else 11})\ns_barrier")
    st(1)
    first_tile(QF, VK, 0, VK, 4096, after_mfma=(later_loads if OPT["a_delay"] else None))
    a(".p2align 6")
    a("L_a_loop:")
    for i in range(16):
        def rd(reg, tile, sub):
            if tile < 16: return f"ds_read_b128 {vr(reg,4)}, v{VK} offset:{tile*4096+sub*1024}"
            return f"ds_read_b128 {vr(reg,4)}, v{VKN} offset:{(tile-16)*4096+sub*1024}"
        mid = None
        if i % 8 == 6:
            def mid():
                st.dyn("s45", 3, 8)
                a("s_waitcnt vmcnt(4)")
                st.dyn("s45", 3, 9)
                a("s_barrier")
                st.dyn("s45", 3, 10)
                a(f"""
                s_cmp_eq_u32 s45, 5
                s_cselect_b32 s44, s38, s44
                s_mov_b32 m0, s43
                s_cmp_ge_u32 s45, 7
                s_cbranch_scc1 L_a_nodma{i}
                """)
                dma("s44")
                a(f"""
                s_add_u32 s44, s44, 32768
                s_add_u32 s43, s43, 32768
                s_and_b32 s43, s43, 0x1ffff
                L_a_nodma{i}:
                s_add_u32 s45, s45, 1
                """)
        tile_iter(i, QF, rd(VB, i, 3), [rd(KF, i + 2, 0), rd(KF + 4, i + 2, 1)], rd(VA, i + 1, 2), pre_qk=mid,
                  chk=(f"b{i}" if i % 4 == 3 else None))
    a(f"""
    v_swap_b32 v{VK}, v{VKN}
    s_cmp_lt_u32 s45, 8
    s_cbranch_scc1 L_a_loop
    """)
    st(2)
    finish(15, "s42", "b", f"s_mov_b32 s54, s37\ns_mov_b32 s55, 64\ns_mov_b32 s56, 0\ns_mov_b32 s57, s40")
    zero_acc()
    a(f"""
    v_add_u32 v{VK}, s35, v{VLANE}      ; + w*4096
    s_add_u32 s48, s16, 1
    s_cmp_eq_u32 s33, 0
    s_cselect_b32 s48, s48, 99
    s_cmp_eq_u32 s48, 1
    s_cselect_b32 s50, 4096, 0
    v_add_u32 v{VKN}, s50, v{VK}
    """)
    st(3)
    a("s_waitcnt vmcnt(2)\ns_barrier")
    st(4)
    J = [7, 8, 6, 5, 4, 3, 2, 1, 0]
    def fix0():
        a("s_cmp_lg_u32 s48, 1\ns_cbranch_scc1 L_a_nofix0")
        for r in range(16): a(f"v_cndmask_b32 v{S[0]+r}, v{S[0]+r}, v{T2}, {sr(64+2*r,2)}")
        a("L_a_nofix0:")
    first_tile(QA, VKN, J[0] * 4096, VK, J[1] * 4096, fix=fix0)
    inval_sites = []
    for i in range(9):
        def rd(reg, t, sub):
            t = min(t, 8)
            return f"ds_read_b128 {vr(reg,4)}, v{VKN if t == 0 else VK} offset:{J[t]*4096+sub*1024}"
        def pre(i=i):
            if i + 1 <= 8:
                a(f"s_cmp_eq_u32 s48, {i+1}\ns_cbranch_scc1 L_a_inv{i}\nL_a_val{i}:")
                inval_sites.append(i)
            if i == 0:
                for r in range(16): a(f"v_cndmask_b32 v{MK+r}, v{NM+r}, v{T2}, {sr(64+2*r,2)}")
                a("s_nop 0")
            if i == 7:
                for r in range(16): a(f"v_cndmask_b32 v{MK+r}, v{T2}, v{NM+r}, {sr(64+2*r,2)}")
                a("s_nop 0")
        tile_iter(i, QA, rd(VB, i, 3), [rd(KF, i + 2, 0), rd(KF + 4, i + 2, 1)], rd(VA, i + 1, 2), first=(i == 0),
                  cblk=(MK if i in (0, 7) else NM), pre_qk=pre, do_qk=(i < 8), chk=(f"a{i}" if i in (2, 5) else None))
    finish(8, "s41", "a", f"""
    s_add_u32 s54, s38, s35
    s_mov_b32 s55, 9
    s_mov_b32 s56, 1
    s_cmp_eq_u32 s33, 0
    s_cbranch_scc0 L_a_slowargs
    s_add_u32 s54, s38, 32768
    s_mov_b32 s55, s48
    s_mov_b32 s56, 2
    L_a_slowargs:
    s_mov_b32 s57, s39""")
    st(5)
    if STAMP: a("s_waitcnt vmcnt(0)")
    st(6)
    st.flush(T0)
    a("L_a_end:\ns_endpgm")
    for i in inval_sites:
        a(f"L_a_inv{i}:\ns_nop 7")
        for r in range(16): a(f"v_mov_b32 v{NM+r}, v{T2}")
        a(f"s_nop 1\ns_branch L_a_val{i}")
    for par, tag in rescue_sites:
        s, sp = S[par], S[par ^ 1]
        a(f"""
        L_resc_{tag}:
        s_nop 15
        v_frexp_exp_i32_f32 v{T0}, v{L}
        v_add_u32 v{T0}, {int(R_OFF)}, v{T0}     ; delta
        v_cvt_f32_i32 v{T1}, v{T0}
        v_sub_u32 v{T0}, 0, v{T0}
        """)
        for r in range(16): a(f"v_ldexp_f32 v{O+r}, v{O+r}, v{T0}")
        a(f"v_ldexp_f32 v{L}, v{L}, v{T0}")
        for r in range(8, 15): a(f"v_ldexp_f32 v{s+r}, v{s+r}, v{T0}")
        a(f"v_sub_f32 v{s+15}, v{s+15}, v{T1}")
        for r in range(16): a(f"v_sub_f32 v{sp+r}, v{sp+r}, v{T1}")
        for r in range(16): a(f"v_sub_f32 v{NM+r}, v{NM+r}, v{T1}")
        a(f"s_nop 1\ns_branch L_back_{tag}")
    s = S[0]; M = S[1]; AL = S[1] + 1
    a(f"""
    L_slow:
    buffer_load_dwordx4 {vr(QF,4)}, v{VLANE}, s[12:15], s57 offen
    buffer_load_dwordx4 {vr(QF+4,4)}, v{VLANE}, s[12:15], s57 offen offset:1024
    v_mov_b32 v{M}, 0xff7fffff
    s_mov_b32 s58, 0
    """)
    zero_acc()
    a(f"""
    L_slow_loop:
    buffer_load_dwordx4 {vr(KF,4)}, v{VKP}, s[12:15], s54 offen
    buffer_load_dwordx4 {vr(KF+4,4)}, v{VKP}, s[12:15], s54 offen offset:1024
    buffer_load_dwordx4 {vr(VA,4)}, v{VLANE}, s[12:15], s54 offen offset:2048
    buffer_load_dwordx4 {vr(VB,4)}, v{VLANE}, s[12:15], s54 offen offset:3072
    s_waitcnt vmcnt(0)
    {mfma(s, KF, QF, "0")}
    {mfma(s, KF+4, QF+4)}
    s_nop 15
    s_cmp_eq_u32 s56, 1
    s_cbranch_scc0 L_slow_nm1
    s_cmp_eq_u32 s58, 0
    s_cbranch_scc0 L_slow_nm1
    """)
    for r in range(16): a(f"v_cndmask_b32 v{s+r}, v{T2}, v{s+r}, {sr(64+2*r,2)}")
    a(f"""
    L_slow_nm1:
    s_add_u32 s58, s58, 1
    s_cmp_eq_u32 s56, 0
    s_cbranch_scc1 L_slow_nm2
    s_cmp_eq_u32 s58, s55
    s_cbranch_scc0 L_slow_nm2
    """)
    for r in range(16): a(f"v_cndmask_b32 v{s+r}, v{s+r}, v{T2}, {sr(64+2*r,2)}")
    a("L_slow_nm2:")
    a(f"v_max3_f32 v{T0}, v{s}, v{s+1}, v{M}")
    for r in range(2, 16, 2): a(f"v_max3_f32 v{T0}, v{T0}, v{s+r}, v{s+r+1}")
    a(f"""
    v_mov_b32 v{T1}, v{T0}
    s_nop 1
    v_permlane32_swap_b32 v{T0}, v{T1}
    s_nop 1
    v_max_f32 v{T0}, v{T0}, v{T1}
    v_sub_f32 v{AL}, v{M}, v{T0}
    v_exp_f32 v{AL}, v{AL}
    v_mov_b32 v{M}, v{T0}
    """)
    for r in range(16): a(f"v_sub_f32 v{s+r}, v{s+r}, v{M}")
    for r in range(16): a(f"v_exp_f32 v{s+r}, v{s+r}")
    for r in range(16): a(f"v_mul_f32 v{O+r}, v{AL}, v{O+r}")
    a(f"""
    v_mul_f32 v{L}, v{AL}, v{L}
    s_nop 3
    {sm32(O, VA, s)}
    {sm32(O, VB, s+8)}
    {sm16(L, AS, s)}
    {sm16(L, AS, s+8)}
    s_nop 15
    s_add_u32 s54, s54, 4096
    s_cmp_lt_u32 s58, s55
    s_cbranch_scc1 L_slow_loop
    s_setpc_b64 s[52:53]
    """)
    return kdesc(K, 144)

PJ_NB = 4
PJ_LDS = PJ_NB * 32768

def gen_proj(a):
    K = "proj_kernel"
    kstart(a, K)
    a("""
    s_cmp_ge_u32 s2, 256
    s_cbranch_scc1 L_p_end
    s_load_dwordx2 s[20:21], s[0:1], 16
    s_load_dwordx2 s[22:23], s[0:1], 40
    s_load_dwordx2 s[24:25], s[0:1], 48
    s_load_dwordx2 s[28:29], s[0:1], 64
    v_lshrrev_b32 v1, 6, v0
    v_and_b32 v0, 63, v0
    s_and_b32 s30, s2, 7
    s_lshr_b32 s31, s2, 3
    v_readfirstlane_b32 s16, v1
    s_lshr_b32 s32, s30, 2        ; part
    s_and_b32 s33, s30, 3
    s_lshl_b32 s33, s33, 2
    s_and_b32 s34, s31, 3
    s_add_u32 s33, s33, s34       ; mt (0..15)
    s_lshr_b32 s34, s31, 2        ; nt (0..7)
    s_waitcnt lgkmcnt(0)
    s_cmp_eq_u32 s32, 0
    s_cselect_b32 s20, s20, s22
    s_cselect_b32 s21, s21, s23
    """)
    srd(a, 4, "s20", "s21", 1024 * 1024 * 2)
    srd(a, 8, "s24", "s25", 2048 * 2048 * 2)
    srd(a, 12, "s28", "s29", WS_SIZE)
    a("""
    s_cmp_ge_u32 s16, 4
    s_cbranch_scc1 L_p_loader
    """)
    a("""
    s_lshr_b32 s36, s16, 1
    s_and_b32 s37, s16, 1
    v_lshlrev_b32 v1, 4, v0
    s_lshl_b32 s38, s36, 13
    v_add_u32 v1, s38, v1
    v_lshrrev_b32 v7, 5, v0       ; h
    v_bfe_u32 v6, v0, 2, 2        ; r = i>>2
    v_lshl_add_u32 v5, v7, 2, v6  ; row = 4h + r
    v_lshlrev_b32 v5, 8, v5       ; *256
    v_and_b32 v4, 1, v0           ; h' = c&1
    v_lshlrev_b32 v4, 2, v4       ; 4h'
    v_bfe_u32 v7, v0, 4, 1        ; G  (g>>1)
    v_or_b32 v4, v4, v7
    s_lshl_b32 s38, s37, 3
    v_or_b32 v4, s38, v4          ; u for b=0
    v_and_b32 v7, 1, v6
    v_lshlrev_b32 v7, 1, v7
    v_xor_b32 v4, v4, v7
    v_lshrrev_b32 v7, 1, v6
    v_lshlrev_b32 v7, 3, v7
    v_xor_b32 v4, v4, v7
    v_bfe_u32 v7, v0, 1, 1        ; g&1
    v_lshl_add_u32 v5, v7, 3, v5
    v_add_u32 v5, 16384, v5
    v_lshl_add_u32 v2, v4, 4, v5
    v_xor_b32 v4, 2, v4
    v_lshl_add_u32 v3, v4, 4, v5
    """)
    ACC = 72
    st = Stamper(a, 6, 2)
    st(0)
    for r in range(ACC, ACC + 64): a(f"v_mov_b32 v{r}, 0")
    F = [8, 40]
    def reads(fs, u):
        r = []
        for kk in range(2):
            ks = 2 * u + kk
            b = F[fs] + 16 * kk
            r.append(f"ds_read_b128 {vr(b,4)}, v1 offset:{ks*1024}")
            r.append(f"ds_read_b64_tr_b16 {vr(b+8,2)}, v2 offset:{ks*4096}")
            r.append(f"ds_read_b64_tr_b16 {vr(b+10,2)}, v2 offset:{ks*4096+2048}")
            r.append(f"ds_read_b64_tr_b16 {vr(b+12,2)}, v3 offset:{ks*4096}")
            r.append(f"ds_read_b64_tr_b16 {vr(b+14,2)}, v3 offset:{ks*4096+2048}")
            r.append(f"ds_read_b128 {vr(b+4,4)}, v1 offset:{4096+ks*1024}")
        return r
    def mfmas(fs):
        m = []
        for kk in range(2):
            b = F[fs] + 16 * kk
            for tt in range(2):
                for bb in range(2):
                    m.append(mfma(ACC + (tt * 2 + bb) * 16, b + 8 + 4 * bb, b + 4 * tt))
        return m
    a("s_mov_b32 s40, 0\ns_mov_b32 s49, 0x8000\ns_barrier")
    st(1)
    for r in reads(0, 0): a(r)
    a(".p2align 6\nL_p_loop:")
    for u in range(2):
        rd = reads(u ^ 1, u ^ 1); mm = mfmas(u)
        a("s_waitcnt lgkmcnt(0)")
        if u == 1:
            a("s_barrier")
            a(mm[0])
            a(f"""
            s_add_u32 s40, s40, 1
            s_and_b32 s41, s40, {PJ_NB-1}
            s_cmp_eq_u32 s41, 0
            s_cselect_b32 s43, {(-(PJ_NB-1)*32768) & 0xffffffff:#x}, s49
            v_add_u32 v1, s43, v1
            v_add_u32 v2, s43, v2
            v_add_u32 v3, s43, v3
            """)
        else:
            a(mm[0])
        a(rd[0]); a(rd[1]); a(rd[2])
        for i in range(1, 8):
            a(mm[i])
            if i < 4:
                a(rd[3 * i]); a(rd[3 * i + 1]); a(rd[3 * i + 2])
    a("s_cmp_lt_u32 s40, 16\ns_cbranch_scc1 L_p_loop")
    st(2)
    SC = OPT["p_sc"]
    a("""
    s_waitcnt lgkmcnt(0)
    s_lshl_b32 s46, s16, 13
    v_and_b32 v1, 31, v0          ; t
    v_lshrrev_b32 v2, 5, v0       ; h'
    v_lshlrev_b32 v2, 2, v2
    v_and_b32 v3, 7, v0
    v_xor_b32 v2, v2, v3          ; (4h') ^ (t&7)
    v_lshlrev_b32 v1, 7, v1
    v_add_u32 v1, s46, v1
    v_lshl_add_u32 v8, v2, 4, v1
    v_xor_b32 v9, 16, v8
    v_xor_b32 v10, 32, v8
    v_xor_b32 v11, 48, v8
    v_lshlrev_b32 v12, 4, v0
    v_add_u32 v12, s46, v12
    s_lshl_b32 s44, s33, 7
    s_lshl_b32 s45, s36, 6
    s_add_u32 s44, s44, s45
    v_lshrrev_b32 v1, 3, v0
    v_xor_b32 v2, v1, v3          ; unit
    v_add_u32 v1, s44, v1
    v_lshlrev_b32 v1, 12, v1
    v_lshl_add_u32 v1, v2, 4, v1
    s_lshl_b32 s44, s32, 11
    s_lshl_b32 s45, s34, 8
    s_add_u32 s44, s44, s45
    s_lshl_b32 s45, s37, 7
    s_add_u32 s44, s44, s45
    """)
    for tt in range(2):
        for bb in range(2):
            d = ACC + (tt * 2 + bb) * 16
            for r in range(8): a(f"v_cvt_pk_bf16_f32 v{d+r}, v{d+2*r}, v{d+2*r+1}")
            a(f"ds_write_b128 v{8+2*bb}, {vr(d,4)} offset:{tt*4096}")
            a(f"ds_write_b128 v{9+2*bb}, {vr(d+4,4)} offset:{tt*4096}")
        a("s_waitcnt lgkmcnt(0)")
        for i in range(4): a(f"ds_read_b128 {vr(16+16*tt+4*i,4)}, v12 offset:{tt*4096+i*1024}")
    for i in range(8):
        a(f"s_waitcnt lgkmcnt({max(0, 7-i) if i >= 4 else 4})")
        a(f"buffer_store_dwordx4 {vr(16+4*i,4)}, v1, s[8:11], s44 offen {SC}")
        a("s_add_u32 s44, s44, 0x8000")
    st(3)
    if STAMP: a("s_waitcnt vmcnt(0)")
    st(4)
    st.flush(1)
    a("s_endpgm")
    a("L_p_loader:")
    a(f"""
    s_sub_u32 s36, s16, 4
    s_lshl_b32 s37, s33, 2
    s_add_u32 s37, s37, s36
    s_lshl_b32 s37, s37, 16
    s_lshl_b32 s38, s32, 22
    s_add_u32 s37, s37, s38
    s_add_u32 s37, s37, {WS_O}
    v_lshlrev_b32 v1, 4, v0
    v_add_u32 v1, s37, v1         ; O voffset
    v_lshrrev_b32 v2, 4, v0       ; r
    v_and_b32 v3, 15, v0          ; p
    v_and_b32 v4, 1, v2
    v_lshlrev_b32 v4, 1, v4
    v_xor_b32 v3, v3, v4
    v_lshrrev_b32 v4, 1, v2
    v_lshlrev_b32 v4, 3, v4
    v_xor_b32 v3, v3, v4          ; u
    s_lshl_b32 s38, s36, 4
    v_add_u32 v2, s38, v2
    v_lshlrev_b32 v2, 11, v2      ; row*2048
    v_lshl_add_u32 v2, v3, 4, v2
    s_lshl_b32 s38, s34, 8
    v_add_u32 v2, s38, v2
    s_lshl_b32 s40, s36, 12       ; lw*4096
    """)
    for j in range(4): a(f"v_add_u32 v{8+j}, {j*4*2048 - j*1024}, v2")
    def ld(s):
        base = (s % PJ_NB) * 32768
        a(f"s_mov_b32 s42, {s*4096}\ns_mov_b32 s43, {s*64*2048}")
        a(f"s_add_u32 m0, s40, {base}\ns_nop 0")
        for j in range(4): a(f"buffer_load_dwordx4 v1, s[12:15], s42 offen offset:{j*1024} lds")
        a(f"s_add_u32 m0, s40, {base+16384}\ns_nop 0")
        for j in range(4): a(f"buffer_load_dwordx4 v{8+j}, s[4:7], s43 offen offset:{j*1024} lds")
    for s in range(PJ_NB): ld(s)
    issued = PJ_NB
    for s in range(16):
        a(f"s_waitcnt vmcnt({(issued - 1 - s) * 8})\ns_barrier")
        if s >= 1 and issued < 16:
            ld(issued); issued += 1
    a("L_p_end:\ns_endpgm")
    return kdesc(K, 136)

def main():
    global STAMP
    if "--stamp" in sys.argv:
        STAMP = True; sys.argv.remove("--stamp")
    for arg in list(sys.argv[1:]):
        if "=" in arg:
            k, v = arg.split("=", 1); OPT[k] = type(OPT[k])(v.replace("+", " ")); sys.argv.remove(arg)
    a = Asm()
    hdr = open("cdna_kernels/%s.s.ref" % NAME).read().split("\n")
    head = [l for l in hdr if l.startswith(";") and "@launch" not in l and "Override" not in l and "grid=ceil" not in l]
    txt = "\n".join(head) + "\n"
    txt += f"; @launch kernel=qkv_kernel grid=(256,1,1) block=(512,1,1) lds={G2_LDS}\n"
    txt += f"; @launch kernel=attn_kernel grid=(256,1,1) block=(512,1,1) lds={AT_LDS}\n"
    txt += f"; @launch kernel=proj_kernel grid=(256,1,1) block=(512,1,1) lds={PJ_LDS}\n"
    txt += '.amdgcn_target "amdgcn-amd-amdhsa--gfx950"\n.text\n'
    d = [gen_qkv2(a), gen_attn(a), gen_proj(a)]
    txt += a.text()
    txt += '.section .rodata,"a"\n' + "".join(d)
    out = sys.argv[1] if len(sys.argv) > 1 else OUT
    open(out, "w").write(txt)
    print("wrote", out, len(txt))

if __name__ == "__main__":
    main()
```

```python
import sys, math, struct

NAME = "concat_heads__sliding_block__mha_block__prompt"
OUT = "cdna_kernels/%s.s" % NAME

def f32(x): return struct.unpack("<I", struct.pack("<f", x))[0]

class Asm:
    def __init__(self): self.l = []
    def __call__(self, s):
        for line in s.strip("\n").split("\n"):
            line = line.strip()
            if not line: continue
            self.l.append(line if line.endswith(":") or line.startswith(".") else "    " + line)
    def text(self): return "\n".join(self.l) + "\n"

def vr(a, n): return "v[%d:%d]" % (a, a + n - 1)
def sr(a, n): return "s[%d:%d]" % (a, a + n - 1)

MB = 1 << 20
OPT = dict(q_sc="sc1", a_sc="sc1", p_sc="sc1", ws_off=0, q_lead=3, q_fast=0, q_touch=1, q_spst=2, q_sdelay=0, q_pro=2, p_pro=2, icp=1, h_ld="sc1")
WS_Q, WS_KV, WS_O, WS_SIZE = 0, 8 * MB, 24 * MB, 34 * MB

def srd(a, s, lo, hi, size):
    if lo == "s28" and OPT["ws_off"]:
        a(f"s_add_u32 s28, s28, {OPT['ws_off']*MB:#x}\ns_addc_u32 s29, s29, 0")
    a(f"""
    s_mov_b32 s{s}, {lo}
    s_mov_b32 s{s+1}, {hi}
    s_mov_b32 s{s+2}, {size:#x}
    s_mov_b32 s{s+3}, 0x00020000
    """)

def kstart(a, name):
    a(f"""
    .globl {name}
    .p2align 8
    .type {name},@function
    {name}:
    """)

def kdesc(name, nfv, nsgpr=102):
    acc = (nfv + 3) // 4 * 4
    return f"""
.p2align 6
.amdhsa_kernel {name}
  .amdhsa_next_free_vgpr {nfv}
  .amdhsa_next_free_sgpr {nsgpr}
  .amdhsa_accum_offset {acc}
  .amdhsa_group_segment_fixed_size 0
  .amdhsa_kernarg_size 72
  .amdhsa_user_sgpr_count 2
  .amdhsa_user_sgpr_kernarg_segment_ptr 1
  .amdhsa_system_sgpr_workgroup_id_x 1
.end_amdhsa_kernel
"""

STAMP = False
class Stamper:
    def __init__(self, a, vreg, kidx): self.a, self.v, self.k = a, vreg, kidx
    def __call__(self, n):
        if not STAMP: return
        self.a(f"""
        s_memtime s[96:97]
        s_memrealtime s[98:99]
        s_waitcnt lgkmcnt(0)
        v_writelane_b32 v{self.v}, s96, {n}
        v_writelane_b32 v{self.v}, s98, {32+n}
        """)
    def dyn(self, sidx, mul, add):
        if not STAMP: return
        self.a(f"""
        s_memtime s[96:97]
        s_mul_i32 s98, {sidx}, {mul}
        s_add_u32 m0, s98, {add}
        s_waitcnt lgkmcnt(0)
        v_writelane_b32 v{self.v}, s96, m0
        """)
    def flush(self, tmp, lane="v0"):
        if not STAMP: return
        self.a(f"""
        s_lshl_b32 s96, s2, 3
        s_add_u32 s96, s96, s16
        s_lshl_b32 s96, s96, 8
        s_add_u32 s96, s96, {WS_SIZE - 2*MB + self.k * 512 * 1024}
        v_lshlrev_b32 v{tmp}, 2, {lane}
        buffer_store_dword v{self.v}, v{tmp}, s[12:15], s96 offen
        """)

def mfma(d, A, B, C=None):
    c = vr(d, 16) if C is None else (C if isinstance(C, str) else vr(C, 16))
    return f"v_mfma_f32_32x32x16_bf16 {vr(d,16)}, {vr(A,4)}, {vr(B,4)}, {c}"

G2_SLOT = 40960
G2_NB = 4
G2_LDS = G2_SLOT * G2_NB
R_OFF = 64.0
T_HI = 2.0 ** 48
SPIN_MAX = 1 << 22

def mfma16(d, A, B):
    return f"v_mfma_f32_16x16x32_bf16 {vr(d,4)}, {vr(A,4)}, {vr(B,4)}, {vr(d,4)}"

def upper_mask(r):
    m = 0
    for l in range(64):
        if r + 16 * (l >> 5) > (l & 31): m |= 1 << l
    return m

def gen_fused(a):
    K = "fused_kernel"
    kstart(a, K)
    S = [16, 32]; O = 48; NM = 64; L = 80; QF = 84; KF = 92; VA = 100; VB = 104; AS = 108; IDX = 112
    QA = 116; MK = 124
    VK, VKN, VLANE, T0, T1, T2, VDMA, VDMAK, VKP, VTCH, VPOFF = range(140, 151)
    VPOLL = 152
    NINF = 0xff800000
    HL = OPT["h_ld"]
    st = Stamper(a, 7, 0)
    a("""
    s_cmp_ge_u32 s2, 256
    s_cbranch_scc1 L_f_end
    s_load_dwordx4 s[20:23], s[0:1], 0
    s_load_dwordx2 s[24:25], s[0:1], 24
    s_load_dwordx2 s[26:27], s[0:1], 32
    s_load_dwordx2 s[28:29], s[0:1], 64
    s_load_dwordx2 s[18:19], s[0:1], 56
    v_lshrrev_b32 v1, 6, v0
    v_and_b32 v0, 63, v0
    s_and_b32 s30, s2, 7          ; xcd
    s_lshr_b32 s31, s2, 3         ; idx
    v_readfirstlane_b32 s16, v1
    s_and_b32 s33, s30, 1
    s_lshl_b32 s33, s33, 3
    s_and_b32 s34, s31, 7
    s_add_u32 s33, s33, s34       ; mt (0..15)
    s_lshr_b32 s34, s30, 1
    s_lshl_b32 s34, s34, 2
    s_lshr_b32 s35, s31, 3
    s_add_u32 s34, s34, s35       ; nt (0..15)
    s_lshl_b32 s49, s34, 4
    s_add_u32 s49, s49, s33
    s_cmp_lt_u32 s16, 4
    s_cbranch_scc1 L_q_compute
    """)

    def attn_scalars():
        a(f"""
        s_and_b32 s30, s2, 7
        s_lshr_b32 s50, s2, 3
        s_lshl_b32 s32, s30, 2
        s_and_b32 s33, s50, 3
        s_add_u32 s32, s32, s33       ; head
        s_lshr_b32 s33, s50, 2        ; qb
        s_lshl_b32 s34, s33, 3
        s_add_u32 s34, s34, s16       ; q tile
        s_lshl_b32 s35, s16, 12       ; w*4096
        s_lshl_b32 s36, s32, 18       ; head*64*4096
        s_add_u32 s37, s36, {WS_KV + 8*MB}
        s_lshl_b32 s38, s33, 15
        s_add_u32 s38, s38, s36
        s_add_u32 s38, s38, {WS_KV - 32768}
        s_lshl_b32 s39, s32, 6
        s_add_u32 s39, s39, s34
        s_lshl_b32 s39, s39, 11       ; Q offset (A)
        s_add_u32 s40, s39, {4*MB}    ; Q offset (B)
        s_lshl_b32 s41, s34, 5
        s_add_u32 s41, s41, s32
        s_lshl_b32 s41, s41, 11
        s_add_u32 s41, s41, {WS_O}    ; O offset (A)
        s_add_u32 s42, s41, {4*MB}    ; O offset (B)
        s_lshr_b32 s51, s32, 1
        s_lshl_b32 s51, s51, 4
        s_mov_b32 s45, 0
        s_mov_b32 s46, {f32(T_HI):#x}
        s_mov_b32 s47, {f32(R_OFF):#x}
        """)
        for r in range(16):
            m = upper_mask(r)
            a(f"s_mov_b32 s{64+2*r}, {m & 0xffffffff:#x}\ns_mov_b32 s{65+2*r}, {m >> 32:#x}")

    def zero_acc():
        for r in range(16): a(f"v_mov_b32 v{O+r}, 0")
        for r in range(4): a(f"v_mov_b32 v{L+r}, 0")

    def attn_vectors():
        a(f"""
        v_and_b32 v{VKP}, 0x23, v0
        v_bfe_u32 v{T0}, v0, 3, 2
        v_lshl_or_b32 v{VKP}, v{T0}, 2, v{VKP}
        v_bfe_u32 v{T0}, v0, 2, 1
        v_lshl_or_b32 v{VKP}, v{T0}, 4, v{VKP}
        v_lshlrev_b32 v{VKP}, 4, v{VKP}
        v_mov_b32 v{IDX}, 0xdddddddd
        v_and_b32 v{T0}, 7, v0
        v_mov_b32 v{T1}, 0x3f803f80
        v_cmp_eq_u32 vcc, 0, v{T0}
        v_mov_b32 v{VK}, v{VLANE}
        v_add_u32 v{VKN}, 65536, v{VLANE}
        v_cndmask_b32 v{AS}, 0, v{T1}, vcc
        v_cndmask_b32 v{AS+1}, 0, v{T1}, vcc
        v_cmp_eq_u32 vcc, 4, v{T0}
        v_mov_b32 v{T2}, {NINF:#x}
        s_nop 0
        v_cndmask_b32 v{AS+2}, 0, v{T1}, vcc
        v_cndmask_b32 v{AS+3}, 0, v{T1}, vcc
        """)
        zero_acc()
        for r in range(8): a(f"v_mov_b32 v{S[1]+8+r}, 0")
        for r in range(4): a(f"v_mov_b32 v{VB+r}, 0")

    def loadq(reg, soff):
        a(f"buffer_load_dwordx4 {vr(reg,4)}, v{VLANE}, s[12:15], {soff} offen {HL}")
        a(f"buffer_load_dwordx4 {vr(reg+4,4)}, v{VLANE}, s[12:15], {soff} offen offset:1024 {HL}")

    def dma_chunk():
        for h in range(2):
            if h == 0: a("s_mov_b32 m0, s43\ns_add_u32 s50, s44, 4096")
            else: a("s_add_u32 m0, s43, 4096\ns_nop 0")
            for i in range(4):
                a(f"buffer_load_dwordx4 v{VDMAK if i < 2 else VDMA}, s[12:15], {'s44' if h == 0 else 's50'} offen offset:{i*1024} {HL} lds")
        a("s_add_u32 s44, s44, 32768\ns_add_u32 s43, s43, 32768\ns_and_b32 s43, s43, 0x1ffff")

    def signal(val, voff, vdat):
        a(f"""
        v_mov_b32 v{voff}, s49
        v_mov_b32 v{vdat}, {val}
        s_mov_b64 exec, 1
        global_store_byte v{voff}, v{vdat}, s[18:19] sc0 sc1
        s_mov_b64 exec, -1
        """)
    def poll_issue():
        a(f"global_load_dwordx4 {vr(VPOLL,4)}, v{VPOFF}, s[18:19] sc0 sc1")
    def poll_test(bit):
        a(f"""
        v_and_b32 v{VPOLL}, v{VPOLL}, v{VPOLL+1}
        v_and_b32 v{VPOLL+2}, v{VPOLL+2}, v{VPOLL+3}
        v_and_b32 v{VPOLL}, v{VPOLL}, v{VPOLL+2}
        s_nop 0
        v_readfirstlane_b32 s50, v{VPOLL}
        s_nop 3
        s_and_b32 s50, s50, {bit * 0x01010101:#x}
        s_cmp_eq_u32 s50, {bit * 0x01010101:#x}
        """)
    def poll_spin(bit, tag):
        a(f"s_mov_b32 s54, {SPIN_MAX}\nL_poll_{tag}:")
        poll_test(bit)
        a(f"""
        s_cbranch_scc1 L_polld_{tag}
        s_sub_u32 s54, s54, 1
        s_cmp_eq_u32 s54, 0
        s_cbranch_scc1 L_polld_{tag}
        s_sleep 8
        """)
        poll_issue()
        a(f"s_waitcnt vmcnt(0)\ns_branch L_poll_{tag}\nL_polld_{tag}:")

    a("""
    s_sub_u32 s36, s16, 4         ; lw
    v_lshrrev_b32 v1, 3, v0       ; l>>3
    v_and_b32 v2, 7, v0           ; l&7
    v_lshrrev_b32 v3, 4, v0       ; l>>4
    s_lshl_b32 s37, s33, 7
    s_lshl_b32 s38, s36, 5
    s_add_u32 s37, s37, s38
    v_add_u32 v4, s37, v1
    v_lshlrev_b32 v4, 11, v4      ; row*2048
    v_xor_b32 v5, v2, v3
    v_xor_b32 v6, 4, v5
    v_lshl_add_u32 v8, v5, 4, v4
    v_lshl_add_u32 v6, v6, 4, v4
    """)
    for n in range(1, 4):
        a(f"v_add_u32 v{8+n}, {n*16384 - n*1024}, v{6 if n & 1 else 8}")
    a("""
    s_lshl_b32 s38, s36, 4
    v_add_u32 v4, s38, v1
    s_mov_b32 s39, 6144
    v_mul_lo_u32 v4, v4, s39
    v_and_b32 v3, 1, v3
    v_lshlrev_b32 v3, 1, v3
    v_xor_b32 v5, v2, v3          ; jj = 0
    v_xor_b32 v6, 4, v5           ; jj = 1
    s_lshl_b32 s38, s34, 7        ; nt*128
    v_add_u32 v4, s38, v4
    v_lshl_add_u32 v5, v5, 4, v4
    v_lshl_add_u32 v6, v6, 4, v4
    """)
    for sec in range(3):
        for jj in range(2):
            p = sec * 2 + jj
            a(f"v_add_u32 v{16+p}, {sec*2048 + jj*8*6144 - (p % 3)*1024}, v{5+jj}")
    a("""
    s_lshl_b32 s40, s36, 12
    s_mul_i32 s41, s36, 6144
    s_add_u32 s41, s41, 16384     ; W lds
    s_add_u32 s58, s34, s33
    s_and_b32 s58, s58, 3         ; class
    """)
    LEAD = OPT["q_lead"]
    def korder(c, first):
        pref = ([(c + i) & 3 for i in range(4)] + list(range(4, 16))) if first else list(range(16))
        seq = []
        for p in range(16):
            if OPT["q_fast"] and not first:
                k = LEAD + 2 * p if (p & 3) == c else (LEAD + 1 + 2 * p if ((p + 2) & 3) == c else 99)
                if k > 15: k = next(x for x in pref if x not in seq)
            elif (p >= 1 or not first) and (p & 3) == c and p + LEAD <= 15 and (p + LEAD) not in seq:
                k = p + LEAD
            else:
                k = next(x for x in pref if x not in seq)
            seq.append(k)
        assert sorted(seq) == list(range(16))
        return seq
    tabs = []
    for c in range(4):
        seq = korder(c, True) + korder(c, False)
        tabs.append([sum(seq[8 * w + i] << (4 * i) for i in range(8)) for w in range(4)])
    for w in range(4): a(f"s_mov_b32 s{60+w}, {tabs[0][w]:#x}")
    for c in range(1, 4):
        a(f"s_cmp_eq_u32 s58, {c}")
        for w in range(4): a(f"s_cselect_b32 s{60+w}, {tabs[c][w]:#x}, s{60+w}")
    a("s_waitcnt lgkmcnt(0)")
    srd(a, 4, "s24", "s25", 2048 * 1024 * 2)
    srd(a, 8, "s26", "s27", 1024 * 3072 * 2)
    def ld(s):
        base = (s % G2_NB) * G2_SLOT
        if s == 16:
            a("s_mov_b32 s4, s20\ns_mov_b32 s5, s21\ns_mov_b32 s8, s22\ns_mov_b32 s9, s23")
        a(f"""
        s_bfe_u32 s44, s{60 + s // 8}, {(4 << 16) | (4 * (s % 8)):#x}
        s_add_u32 m0, s40, {base}
        s_lshl_b32 s42, s44, 7
        s_mul_i32 s43, s44, {64*6144}
        """)
        for n in range(4): a(f"buffer_load_dwordx4 v{8+n}, s[4:7], s42 offen offset:{n*1024} lds")
        a(f"s_add_u32 m0, s41, {base}\ns_nop 0")
        for p in range(3): a(f"buffer_load_dwordx4 v{16+p}, s[8:11], s43 offen offset:{p*1024} lds")
        a(f"s_add_u32 m0, s41, {base+3072}\ns_nop 0")
        for p in range(3): a(f"buffer_load_dwordx4 v{19+p}, s[8:11], s43 offen offset:{p*1024} lds")
    PRO = OPT["q_pro"]
    for s in range(PRO): ld(s)
    srd(a, 12, "s28", "s29", WS_SIZE)
    TCH = OPT["q_touch"]
    if TCH:
        a(f"""
        v_mul_lo_u32 v24, v0, s39
        s_lshl_b32 s50, s36, 11
        s_add_u32 s50, s50, s38
        v_add_u32 v24, s50, v24
        s_lshl_b32 s51, s33, 7
        v_add_u32 v25, s51, v0
        v_lshlrev_b32 v25, 11, v25
        s_cmp_eq_u32 s36, 3
        s_cselect_b32 s52, s20, s22
        s_cselect_b32 s53, s21, s23
        s_cselect_b32 s54, s6, s10
        s_mov_b32 s55, 0x00020000
        s_mov_b32 s51, {64*6144}
        s_cselect_b32 s51, 128, s51
        s_cselect_b32 s56, {64*2048}, 0
        s_cselect_b64 vcc, -1, 0
        v_cndmask_b32 v24, v24, v25, vcc
        """)
    SD = OPT["q_sdelay"]
    NPEEL = -(-12 // OPT["q_spst"]); NPEEL += NPEEL & 1
    SIGB = 16 + SD + NPEEL + 2
    assert SIGB <= 30
    q = [s for s in range(PRO) for _ in range(10)]
    issued = PRO
    for s in range(31):
        last = max(i for i, x in enumerate(q) if x == s)
        a(f"s_waitcnt vmcnt({len(q) - 1 - last})")
        a("s_barrier")
        if STAMP: a(f"s_memtime s[96:97]\ns_waitcnt lgkmcnt(0)\nv_writelane_b32 v7, s96, {32+s}")
        q = q[last + 1:]
        if issued < 32 and issued <= s + G2_NB - 1:
            p = issued
            if TCH and 16 - LEAD <= p < 16:
                a(f"""
                s_cmp_lg_u32 s58, {p & 3}
                s_cbranch_scc1 L_q_nt{p}
                s_mul_i32 s50, s51, {p + LEAD - 16}
                buffer_load_dword v27, v24, s[52:55], s50 offen
                s_add_u32 s50, s50, s56
                buffer_load_dword v27, v24, s[52:55], s50 offen
                L_q_nt{p}:
                """)
            ld(issued); q += [issued] * 10; issued += 1
        if s == 29:
            assert issued == 32
            attn_scalars()
            a(f"""
            v_lshlrev_b32 v{VLANE}, 4, v0
            s_sub_u32 s43, s16, 4
            s_lshl_b32 s43, s43, 13       ; lw*8192
            s_mov_b32 s44, s37
            v_mov_b32 v{VPOFF}, s51
            """)
            attn_vectors()
            a(f"v_add_u32 v{VDMA}, s43, v{VLANE}\nv_add_u32 v{VDMAK}, s43, v{VKP}")
    poll_issue()
    a("s_waitcnt vmcnt(0)")
    poll_test(1)
    a("s_cbranch_scc0 L_q_late")
    dma_chunk(); loadq(QF, "s40"); dma_chunk()
    a("s_barrier\ns_branch L_q_join")
    a("L_q_late:\ns_barrier")
    poll_issue()
    a("s_waitcnt vmcnt(0)")
    poll_spin(1, "b")
    dma_chunk(); loadq(QF, "s40"); dma_chunk()
    a("L_q_join:")
    dma_chunk()
    a("s_waitcnt vmcnt(16)\ns_barrier")
    st(3)
    a("s_branch L_a_start")

    a("L_q_compute:")
    c = math.log2(math.e) / math.sqrt(32.0)
    a(f"""
    s_lshr_b32 s36, s16, 1        ; wm
    s_and_b32 s37, s16, 1         ; wh
    v_and_b32 v6, 15, v0          ; t
    v_lshrrev_b32 v7, 4, v0       ; g
    v_bfe_u32 v5, v0, 1, 3        ; f = (t>>1)&7
    v_lshlrev_b32 v6, 7, v6       ; t*128
    s_lshl_b32 s38, s36, 13
    v_add_u32 v6, s38, v6         ; + wm*8192
    v_xor_b32 v1, v7, v5
    v_xor_b32 v2, 4, v1
    v_lshl_add_u32 v1, v1, 4, v6
    v_lshl_add_u32 v2, v2, 4, v6
    v_lshrrev_b32 v6, 5, v0       ; g>>1
    s_mov_b32 s39, 6144
    v_mul_lo_u32 v6, v6, s39
    v_and_b32 v7, 1, v7           ; g&1
    v_bfe_u32 v5, v0, 2, 2        ; r = i>>2
    v_lshl_add_u32 v5, v7, 3, v5  ; 8(g&1) + r
    v_lshl_add_u32 v6, v5, 7, v6
    v_and_b32 v5, 3, v0
    v_lshl_add_u32 v6, v5, 3, v6  ; + (i&3)*8
    v_add_u32 v6, 16384, v6
    v_bfe_u32 v5, v0, 3, 1        ; (r>>1)&1
    v_lshl_or_b32 v5, v7, 1, v5   ; swz
    s_lshl_b32 s38, s37, 1
    v_xor_b32 v5, s38, v5
    v_lshl_add_u32 v3, v5, 5, v6
    v_xor_b32 v5, 1, v5
    v_lshl_add_u32 v4, v5, 5, v6
    s_lshl_b32 s44, s34, 1
    s_add_u32 s44, s44, s37       ; head
    s_lshl_b32 s44, s44, 6
    s_lshl_b32 s45, s33, 2
    s_add_u32 s44, s44, s45
    s_lshl_b32 s45, s36, 1
    s_add_u32 s44, s44, s45
    s_lshl_b32 s60, s44, 11
    s_add_u32 s60, s60, {4*MB}    ; Q base (B)
    s_lshl_b32 s61, s44, 12
    s_add_u32 s61, s61, {WS_KV + 8*MB}
    s_add_u32 s62, s61, 4096
    s_mov_b32 s63, {f32(c):#x}
    v_and_b32 v5, 15, v0
    v_lshrrev_b32 v6, 4, v0
    v_lshlrev_b32 v5, 4, v5
    v_lshl_add_u32 v5, v6, 9, v5  ; g*512 + (l&15)*16
    s_mov_b32 s17, 0
    s_cmp_eq_u32 s16, 0
    s_cselect_b32 s58, {SIGB}, 99
    """)
    if OPT["icp"]:
        a("""
        s_getpc_b64 s[4:5]
        L_pc0:
        s_sub_u32 s4, s4, L_pc0-fused_kernel
        s_subb_u32 s5, s5, 0
        s_mov_b32 s6, L_code_end-fused_kernel
        s_mov_b32 s7, 0x00020000
        s_and_b32 s44, s31, 1
        s_lshl_b32 s44, s44, 2
        s_add_u32 s44, s44, s16
        s_lshl_b32 s44, s44, 13
        v_lshlrev_b32 v6, 7, v0
        buffer_load_dword v6, v6, s[4:7], s44 offen
        """)
    a(f"s_mov_b32 s31, {G2_SLOT}\ns_waitcnt lgkmcnt(0)")
    srd(a, 12, "s28", "s29", WS_SIZE)
    st(0)
    attn_scalars()
    for r in range(64, 256): a(f"v_mov_b32 v{r}, 0")
    XF = [8, 24]; WF = 40
    def acc(st_, t, s):
        sec, cb = s >> 1, s & 1
        b = 64 + 96 * st_
        if sec < 2: return b + ((t * 2 + sec) * 2 + cb) * 4
        return b + 64 + (((t >> 1) * 2 + cb) * 2 + (t & 1)) * 4
    def rdx(buf, t, ks): return f"ds_read_b128 {vr(XF[buf]+4*t,4)}, v{1+ks} offset:{t*2048}"
    def rdw(s, half, ks):
        sec, cb = s >> 1, s & 1
        return f"ds_read_b64_tr_b16 {vr(WF+4*s+2*half,2)}, v{3+cb} offset:{ks*12288+sec*2048+half*512}"
    SC = OPT["q_sc"]
    def epi_ops(st_):
        ops = []
        for T in range(2):
            for tl in range(2):
                t = 2 * T + tl
                d = acc(st_, t, 0)
                ops += [f"v_mul_f32 v{d+r}, s63, v{d+r}" for r in range(8)]
                ops += [f"v_cvt_pk_bf16_f32 v{d+r}, v{d+2*r}, v{d+2*r+1}" for r in range(4)]
                ops.append(f"buffer_store_dwordx4 {vr(d,4)}, v5, s[12:15], s60 offen offset:{T*2048+tl*256} {SC}")
                d = acc(st_, t, 2)
                ops += [f"v_cvt_pk_bf16_f32 v{d+r}, v{d+2*r}, v{d+2*r+1}" for r in range(4)]
                ops.append(f"buffer_store_dwordx4 {vr(d,4)}, v5, s[12:15], s{61+T} offen offset:{tl*256} {SC}")
            for cb in range(2):
                d = acc(st_, 2 * T, 4 + cb)
                ops += [f"v_cvt_pk_bf16_f32 v{d+r}, v{d+2*r}, v{d+2*r+1}" for r in range(4)]
                ops.append(f"buffer_store_dwordx4 {vr(d,4)}, v5, s[12:15], s{61+T} offen offset:{2048+cb*256} {SC}")
        return ops
    a("s_barrier")
    st(1)
    for t in range(4): a(rdx(0, t, 0))
    for s in range(6):
        a(rdw(s, 0, 0)); a(rdw(s, 1, 0))
    BAR = 24 + 8
    RS = {}
    def put(i, op): RS.setdefault(i, []).append(op)
    put(0, ("w", 5, 0, rdw(5, 1, 0)))
    for s_ in range(6):
        put(4 * s_ + 3, ("w", s_, 1, rdw(s_, 0, 1))); put(4 * s_ + 4, ("w", s_, 1, rdw(s_, 1, 1)))
    for t in range(4): put(1 + 4 * t, ("x", t, 1, rdx(1, t, 1)))
    order = [("w", 0, 0, rdw(0, 0, 0)), ("w", 0, 0, rdw(0, 1, 0))] + [("x", t, 0, rdx(0, t, 0)) for t in range(4)]
    for s_ in range(1, 6): order += [("w", s_, 0, rdw(s_, 0, 0)), ("w", s_, 0, rdw(s_, 1, 0))]
    pos = BAR + 1
    for op in order[:-1]:
        if op[0] == "w": pos = max(pos, 24 + 4 * op[1] + 3)
        assert pos <= 47
        put(pos, op); pos += 1
    MISC = {25: [f"s_add_u32 s17, s17, 1", f"s_and_b32 s3, s17, {G2_NB-1}"],
            26: ["s_cmp_eq_u32 s3, 0", f"s_cselect_b32 s59, {(-(G2_NB-1)*G2_SLOT) & 0xffffffff:#x}, s31"],
            27: ["v_add_u32 v3, s59, v3", "v_add_u32 v1, s59, v1"],
            28: ["v_add_u32 v4, s59, v4", "v_add_u32 v2, s59, v2"],
            31: ["s_waitcnt lgkmcnt(0)"]}
    def steady(): return [op[:3] for op in order[:-1]][3:]
    def stage(st_, extra=None, endcmp=None, maxstores=99, prebar=None, sig=False):
        LQ = steady(); nst = 0
        for i in range(48):
            ks, s_, t = i // 24, (i % 24) >> 2, i & 3
            x, w = XF[ks] + 4 * t, WF + 4 * s_
            a(mfma16(acc(st_, t, s_), w, x) if s_ < 4 else mfma16(acc(st_, t, s_), x, w))
            n = (i + 1) % 48
            need = [("w", (n % 24) >> 2, n // 24), ("x", n & 3, n // 24)]
            idx = [j for j, e in enumerate(LQ) if e in need]
            if idx:
                a(f"s_waitcnt lgkmcnt({len(LQ) - 1 - max(idx)})")
                del LQ[:max(idx) + 1]
            nslots = 2
            for op in RS.get(i, []):
                a(op[3]); LQ.append(op[:3]); nslots -= 1
            for op in MISC.get(i, []):
                a(op); nslots -= 1
                if op.startswith("s_waitcnt lgkm"): LQ.clear()
            if i == 2 and sig: a("s_cmp_eq_u32 s17, s58\ns_cbranch_scc1 L_q_sig\nL_q_sigd:"); nslots = 0
            if i == 29 and endcmp: a(endcmp); nslots -= 1
            if i == 30 and prebar: a(prebar); nslots -= 1
            if i == BAR: a("s_barrier"); nslots = 0
            if i == 47: nslots = 0
            while extra and nslots > 0:
                if extra[0].startswith("buffer"):
                    if nst >= maxstores or nslots < 2: break
                    nst += 1
                op = extra.pop(0); a(op); nslots -= (2 if op.startswith("buffer") else 1)
        assert LQ == steady()
    a("s_waitcnt lgkmcnt(0)")
    a(".p2align 6\nL_q_loopB:")
    for u in range(2): stage(0, endcmp=("s_cmp_lt_u32 s17, 16" if u else None))
    a("s_cbranch_scc1 L_q_loopB")
    st(2)
    if SD == 2:
        for u in range(2): stage(1)
    elif SD:
        a(".p2align 6\nL_q_loopA0:")
        for u in range(2): stage(1, endcmp=(f"s_cmp_lt_u32 s17, {16+SD}" if u else None))
        a("s_cbranch_scc1 L_q_loopA0")
    ex = ["s_nop 0"] * 6 + epi_ops(0)
    for u in range(NPEEL): stage(1, ex, maxstores=OPT["q_spst"])
    assert not ex
    stage(1); stage(1, prebar="s_waitcnt vmcnt(0)")
    a(".p2align 6\nL_q_loopA:")
    for u in range(2): stage(1, endcmp=("s_cmp_lt_u32 s17, 32" if u else None), sig=(u == 0))
    a("s_cbranch_scc1 L_q_loopA")
    a(f"v_lshlrev_b32 v{VLANE}, 4, v0")
    loadq(QF, "s40")
    a(f"""
    s_sub_u32 s60, s60, {4*MB}
    s_sub_u32 s61, s61, {8*MB}
    s_sub_u32 s62, s62, {8*MB}
    s_waitcnt lgkmcnt(0)
    """)
    attn_vectors()
    eo = epi_ops(1)
    for op in eo:
        if not op.startswith("buffer"): a(op)
    trickle = [op for op in eo if op.startswith("buffer")]
    a("s_waitcnt vmcnt(0)")
    st(3)

    def sm32(d, A, B): return f"v_smfmac_f32_32x32x32_bf16 {vr(d,16)}, {vr(A,4)}, {vr(B,8)}, v{IDX}"
    def sm16(d, A, B): return f"v_smfmac_f32_16x16x64_bf16 {vr(d,4)}, {vr(A,4)}, {vr(B,8)}, v{IDX}"
    ASC = OPT["a_sc"]

    def first_tile(q, addr0, off0, addr1, off1, fix=None):
        a(f"""
        ds_read_b128 {vr(KF,4)}, v{addr0} offset:{off0}
        ds_read_b128 {vr(KF+4,4)}, v{addr0} offset:{off0+1024}
        s_waitcnt lgkmcnt(0)
        {mfma(S[0], KF, q, "0")}
        {mfma(S[0], KF+4, q+4)}
        ds_read_b128 {vr(KF,4)}, v{addr1} offset:{off1}
        ds_read_b128 {vr(KF+4,4)}, v{addr1} offset:{off1+1024}
        ds_read_b128 {vr(VA,4)}, v{addr0} offset:{off0+2048}
        s_nop 12
        """)
        if fix: fix()
        s = S[0]
        a(f"v_max3_f32 v{T0}, v{s}, v{s+1}, v{s+2}")
        for r in range(3, 15, 2): a(f"v_max3_f32 v{T0}, v{T0}, v{s+r}, v{s+r+1}")
        a(f"""
        v_max_f32 v{T0}, v{T0}, v{s+15}
        v_mov_b32 v{T1}, v{T0}
        s_nop 1
        v_permlane32_swap_b32 v{T0}, v{T1}
        s_nop 1
        v_max_f32 v{T0}, v{T0}, v{T1}
        v_add_f32 v{T0}, s47, v{T0}
        v_sub_f32 v{NM}, 0, v{T0}
        """)
        for r in range(1, 16): a(f"v_mov_b32 v{NM+r}, v{NM}")
        for r in range(16): a(f"v_add_f32 v{s+r}, v{NM}, v{s+r}")

    rescue_sites = []
    def tile_iter(i, q, rdVb, rdK, rdVa, first=False, cblk=NM, pre_qk=None, do_qk=True, chk=None):
        s, sp = S[i & 1], S[(i + 1) & 1]
        e = [f"v_exp_f32 v{s+r}, v{s+r}" for r in range(16)]
        a(e[0]); a(e[1])
        if not first: a(sm32(O, VB, sp + 8))
        a(rdVb)
        a(e[2]); a(e[3]); a(e[4])
        if not first: a(sm16(L, AS, sp + 8))
        a("s_waitcnt lgkmcnt(3)")
        if pre_qk: pre_qk()
        a(e[5])
        if do_qk: a(mfma(sp, KF, q, cblk))
        a("s_waitcnt lgkmcnt(2)")
        a(rdK[0])
        a(e[6]); a(e[7]); a(e[8])
        if do_qk: a(mfma(sp, KF + 4, q + 4))
        a("s_waitcnt lgkmcnt(2)")
        a(rdK[1])
        a(e[9]); a(e[10]); a(e[11])
        a(sm32(O, VA, s))
        a(rdVa)
        a(e[12]); a(e[13])
        if chk: a(f"v_cmp_lt_f32 vcc, s46, v{L}")
        a(e[14])
        a(sm16(L, AS, s))
        a("s_waitcnt lgkmcnt(3)")
        if chk:
            a(f"s_cbranch_vccnz L_resc_{chk}")
            a(f"L_back_{chk}:")
            rescue_sites.append((i & 1, chk))
        a(e[15])

    def finish(i_last, ooff, tag, slow_args):
        sp = S[i_last & 1]
        a(f"""
        s_waitcnt lgkmcnt(0)
        s_nop 1
        {sm32(O, VB, sp + 8)}
        {sm16(L, AS, sp + 8)}
        s_nop 12
        v_mul_f32 v{T0}, 0, v{L}
        """)
        for r in range(16): a(f"v_fma_f32 v{T0}, v{O+r}, 0, v{T0}")
        a(f"""
        v_rcp_f32 v{T1}, v{L}
        v_cmp_u_f32 vcc, v{T0}, v{T0}
        s_nop 1
        s_cbranch_vccz L_ok_{tag}
        {slow_args}
        s_call_b64 s[52:53], L_slow
        v_rcp_f32 v{T1}, v{L}
        s_nop 0
        L_ok_{tag}:
        """)
        for r in range(16): a(f"v_mul_f32 v{O+r}, v{T1}, v{O+r}")
        for r in range(8): a(f"v_cvt_pk_bf16_f32 v{MK+r}, v{O+2*r}, v{O+2*r+1}")
        a(f"""
        buffer_store_dwordx4 {vr(MK,4)}, v{VLANE}, s[12:15], {ooff} offen {ASC}
        buffer_store_dwordx4 {vr(MK+4,4)}, v{VLANE}, s[12:15], {ooff} offen offset:1024 {ASC}
        """)

    def rd(reg, tile, sub):
        if tile < 16: return f"ds_read_b128 {vr(reg,4)}, v{VK} offset:{tile*4096+sub*1024}"
        return f"ds_read_b128 {vr(reg,4)}, v{VKN} offset:{(tile-16)*4096+sub*1024}"
    out_of_line = []
    def body(tag, stores=None):
        for i in range(16):
            mid = None
            if i % 8 == 6:
                if stores is not None:
                    def mid():
                        a("s_barrier\ns_add_u32 s45, s45, 1")
                else:
                    def mid(i=i):
                        a(f"""
                        s_cmp_ge_u32 s16, 4
                        s_cbranch_scc1 L_mid_ld{i}
                        s_waitcnt vmcnt(0)
                        s_barrier
                        """)
                        if i == 6:
                            a(f"s_add_u32 s50, s45, s35\ns_cmp_eq_u32 s50, 2\ns_cbranch_scc1 L_mid_sig")
                        a(f"L_mid_back{i}:")
                        if i == 6:
                            a(f"s_cmp_eq_u32 s45, 6\ns_cbranch_scc1 L_mid_qa\nL_mid_qad:")
                        a("s_add_u32 s45, s45, 1")
                        out_of_line.append(i)
            elif stores and 1 <= i:
                def mid():
                    a(stores.pop(0))
            tile_iter(i, QF, rd(VB, i, 3), [rd(KF, i + 2, 0), rd(KF + 4, i + 2, 1)], rd(VA, i + 1, 2), pre_qk=mid,
                      chk=(f"{tag}{i}" if i % 4 == 3 else None))
        a(f"v_swap_b32 v{VK}, v{VKN}")
    first_tile(QF, VK, 0, VK, 4096)
    body("p", trickle)
    assert not trickle
    a("s_branch L_a_loop")
    a("L_a_start:")
    first_tile(QF, VK, 0, VK, 4096)
    a(".p2align 6")
    a("L_a_loop:")
    body("b")
    a("s_cmp_lt_u32 s45, 8\ns_cbranch_scc1 L_a_loop")
    st(4)
    finish(15, "s42", "b", f"s_mov_b32 s54, s37\ns_mov_b32 s55, 64\ns_mov_b32 s56, 0\ns_mov_b32 s57, s40")
    zero_acc()
    a(f"""
    v_add_u32 v{VK}, s35, v{VLANE}      ; + w*4096
    s_add_u32 s48, s16, 1
    s_cmp_eq_u32 s33, 0
    s_cselect_b32 s48, s48, 99
    s_cmp_eq_u32 s48, 1
    s_cselect_b32 s50, 4096, 0
    v_add_u32 v{VKN}, s50, v{VK}
    s_waitcnt vmcnt(2)
    s_barrier
    """)
    st(5)
    J = [7, 8, 6, 5, 4, 3, 2, 1, 0]
    def fix0():
        a("s_cmp_lg_u32 s48, 1\ns_cbranch_scc1 L_a_nofix0")
        for r in range(16): a(f"v_cndmask_b32 v{S[0]+r}, v{S[0]+r}, v{T2}, {sr(64+2*r,2)}")
        a("L_a_nofix0:")
    first_tile(QA, VKN, J[0] * 4096, VK, J[1] * 4096, fix=fix0)
    inval_sites = []
    for i in range(9):
        def rda(reg, t, sub):
            t = min(t, 8)
            return f"ds_read_b128 {vr(reg,4)}, v{VKN if t == 0 else VK} offset:{J[t]*4096+sub*1024}"
        def pre(i=i):
            if i + 1 <= 8:
                a(f"s_cmp_eq_u32 s48, {i+1}\ns_cbranch_scc1 L_a_inv{i}\nL_a_val{i}:")
                inval_sites.append(i)
            if i == 0:
                for r in range(16): a(f"v_cndmask_b32 v{MK+r}, v{NM+r}, v{T2}, {sr(64+2*r,2)}")
                a("s_nop 0")
            if i == 7:
                for r in range(16): a(f"v_cndmask_b32 v{MK+r}, v{T2}, v{NM+r}, {sr(64+2*r,2)}")
                a("s_nop 0")
        tile_iter(i, QA, rda(VB, i, 3), [rda(KF, i + 2, 0), rda(KF + 4, i + 2, 1)], rda(VA, i + 1, 2), first=(i == 0),
                  cblk=(MK if i in (0, 7) else NM), pre_qk=pre, do_qk=(i < 8), chk=(f"a{i}" if i in (2, 5) else None))
    finish(8, "s41", "a", f"""
    s_add_u32 s54, s38, s35
    s_mov_b32 s55, 9
    s_mov_b32 s56, 1
    s_cmp_eq_u32 s33, 0
    s_cbranch_scc0 L_a_slowargs
    s_add_u32 s54, s38, 32768
    s_mov_b32 s55, s48
    s_mov_b32 s56, 2
    L_a_slowargs:
    s_mov_b32 s57, s39""")
    st(6)
    if STAMP: a("s_waitcnt vmcnt(0)")
    st(7)
    st.flush(T0)
    a("L_f_end:\ns_endpgm")
    for i in out_of_line:
        a(f"L_mid_ld{i}:")
        a("s_waitcnt vmcnt(8)\ns_barrier")
        if i == 6:
            a(f"""
            s_cmp_eq_u32 s45, 6
            s_cbranch_scc0 L_mid_e1
            s_add_u32 s44, s38, 32768        ; chunk 9
            L_mid_e1:
            s_cmp_eq_u32 s45, 4
            s_cbranch_scc0 L_mid_e2
            """)
            poll_issue()
            a(f"""
            L_mid_e2:
            s_cmp_eq_u32 s45, 0
            s_cbranch_scc0 L_mid_e3
            s_load_dwordx2 s[20:21], s[0:1], 16
            s_load_dwordx2 s[22:23], s[0:1], 40
            s_and_b32 s50, s2, 127
            s_lshl_b32 s50, s50, 2
            s_add_u32 s50, s50, s16
            s_sub_u32 s50, s50, 4
            s_lshl_b32 s50, s50, 12
            v_lshlrev_b32 v{VTCH}, 6, v0
            s_waitcnt lgkmcnt(0)
            s_cmp_lt_u32 s2, 128
            s_cselect_b32 s4, s20, s22
            s_cselect_b32 s5, s21, s23
            s_mov_b32 s6, {1024*1024*2:#x}
            s_mov_b32 s7, 0x00020000
            buffer_load_dword v{VTCH}, v{VTCH}, s[4:7], s50 offen
            L_mid_e3:
            """)
            dma_chunk()
        else:
            a(f"""
            s_cmp_eq_u32 s45, 7
            s_cbranch_scc1 L_mid_back{i}
            s_cmp_eq_u32 s45, 5
            s_cbranch_scc0 L_mid_o1
            """)
            poll_spin(2, "a")
            a(f"""
            s_add_u32 s44, s38, 32768
            s_cmp_eq_u32 s33, 0
            s_cselect_b32 s44, s44, s38
            L_mid_o1:
            """)
            dma_chunk()
        a(f"s_branch L_mid_back{i}")
    a("L_q_sig:")
    signal(1, T0, T1)
    a("s_branch L_q_sigd")
    a("L_mid_sig:")
    signal(3, T0, T1)
    a("s_branch L_mid_back6")
    a("L_mid_qa:")
    loadq(QA, "s39")
    a("s_branch L_mid_qad")
    for i in inval_sites:
        a(f"L_a_inv{i}:\ns_nop 7")
        for r in range(16): a(f"v_mov_b32 v{NM+r}, v{T2}")
        a(f"s_nop 1\ns_branch L_a_val{i}")
    for par, tag in rescue_sites:
        a(f"L_resc_{tag}:\ns_call_b64 s[52:53], L_resc{par}\ns_branch L_back_{tag}")
    for par in range(2):
        s, sp = S[par], S[par ^ 1]
        a(f"""
        L_resc{par}:
        s_nop 15
        v_frexp_exp_i32_f32 v{T0}, v{L}
        v_add_u32 v{T0}, {int(R_OFF)}, v{T0}     ; delta
        v_cvt_f32_i32 v{T1}, v{T0}
        v_sub_u32 v{T0}, 0, v{T0}
        """)
        for r in range(16): a(f"v_ldexp_f32 v{O+r}, v{O+r}, v{T0}")
        a(f"v_ldexp_f32 v{L}, v{L}, v{T0}")
        for r in range(8, 15): a(f"v_ldexp_f32 v{s+r}, v{s+r}, v{T0}")
        a(f"v_sub_f32 v{s+15}, v{s+15}, v{T1}")
        for r in range(16): a(f"v_sub_f32 v{sp+r}, v{sp+r}, v{T1}")
        for r in range(16): a(f"v_sub_f32 v{NM+r}, v{NM+r}, v{T1}")
        a("s_nop 1\ns_setpc_b64 s[52:53]")
    s = S[0]; M = S[1]; AL = S[1] + 1
    a("L_slow:")
    loadq(QF, "s57")
    a(f"v_mov_b32 v{M}, 0xff7fffff\ns_mov_b32 s58, 0")
    zero_acc()
    a(f"""
    L_slow_loop:
    buffer_load_dwordx4 {vr(KF,4)}, v{VKP}, s[12:15], s54 offen {HL}
    buffer_load_dwordx4 {vr(KF+4,4)}, v{VKP}, s[12:15], s54 offen offset:1024 {HL}
    buffer_load_dwordx4 {vr(VA,4)}, v{VLANE}, s[12:15], s54 offen offset:2048 {HL}
    buffer_load_dwordx4 {vr(VB,4)}, v{VLANE}, s[12:15], s54 offen offset:3072 {HL}
    s_waitcnt vmcnt(0)
    {mfma(s, KF, QF, "0")}
    {mfma(s, KF+4, QF+4)}
    s_nop 15
    s_cmp_eq_u32 s56, 1
    s_cbranch_scc0 L_slow_nm1
    s_cmp_eq_u32 s58, 0
    s_cbranch_scc0 L_slow_nm1
    """)
    for r in range(16): a(f"v_cndmask_b32 v{s+r}, v{T2}, v{s+r}, {sr(64+2*r,2)}")
    a(f"""
    L_slow_nm1:
    s_add_u32 s58, s58, 1
    s_cmp_eq_u32 s56, 0
    s_cbranch_scc1 L_slow_nm2
    s_cmp_eq_u32 s58, s55
    s_cbranch_scc0 L_slow_nm2
    """)
    for r in range(16): a(f"v_cndmask_b32 v{s+r}, v{s+r}, v{T2}, {sr(64+2*r,2)}")
    a("L_slow_nm2:")
    a(f"v_max3_f32 v{T0}, v{s}, v{s+1}, v{M}")
    for r in range(2, 16, 2): a(f"v_max3_f32 v{T0}, v{T0}, v{s+r}, v{s+r+1}")
    a(f"""
    v_mov_b32 v{T1}, v{T0}
    s_nop 1
    v_permlane32_swap_b32 v{T0}, v{T1}
    s_nop 1
    v_max_f32 v{T0}, v{T0}, v{T1}
    v_sub_f32 v{AL}, v{M}, v{T0}
    v_exp_f32 v{AL}, v{AL}
    v_mov_b32 v{M}, v{T0}
    """)
    for r in range(16): a(f"v_sub_f32 v{s+r}, v{s+r}, v{M}")
    for r in range(16): a(f"v_exp_f32 v{s+r}, v{s+r}")
    for r in range(16): a(f"v_mul_f32 v{O+r}, v{AL}, v{O+r}")
    a(f"""
    v_mul_f32 v{L}, v{AL}, v{L}
    s_nop 3
    {sm32(O, VA, s)}
    {sm32(O, VB, s+8)}
    {sm16(L, AS, s)}
    {sm16(L, AS, s+8)}
    s_nop 15
    s_add_u32 s54, s54, 4096
    s_cmp_lt_u32 s58, s55
    s_cbranch_scc1 L_slow_loop
    s_setpc_b64 s[52:53]
    """)
    return kdesc(K, 256)

PJ_NB = 4
PJ_LDS = PJ_NB * 32768

def gen_proj(a):
    K = "proj_kernel"
    kstart(a, K)
    a("""
    s_cmp_ge_u32 s2, 256
    s_cbranch_scc1 L_p_end
    s_load_dwordx2 s[20:21], s[0:1], 16
    s_load_dwordx2 s[22:23], s[0:1], 40
    s_load_dwordx2 s[24:25], s[0:1], 48
    s_load_dwordx2 s[28:29], s[0:1], 64
    v_lshrrev_b32 v1, 6, v0
    v_and_b32 v0, 63, v0
    s_and_b32 s30, s2, 7
    s_lshr_b32 s31, s2, 3
    v_readfirstlane_b32 s16, v1
    s_lshr_b32 s32, s30, 2        ; part
    s_and_b32 s33, s30, 3
    s_lshl_b32 s33, s33, 2
    s_and_b32 s34, s31, 3
    s_add_u32 s33, s33, s34       ; mt (0..15)
    s_lshr_b32 s34, s31, 2        ; nt (0..7)
    s_waitcnt lgkmcnt(0)
    s_cmp_eq_u32 s32, 0
    s_cselect_b32 s20, s20, s22
    s_cselect_b32 s21, s21, s23
    """)
    srd(a, 4, "s20", "s21", 1024 * 1024 * 2)
    srd(a, 8, "s24", "s25", 2048 * 2048 * 2)
    srd(a, 12, "s28", "s29", WS_SIZE)
    a("""
    s_cmp_ge_u32 s16, 4
    s_cbranch_scc1 L_p_loader
    """)
    a("""
    s_lshr_b32 s36, s16, 1
    s_and_b32 s37, s16, 1
    v_lshlrev_b32 v1, 4, v0
    s_lshl_b32 s38, s36, 13
    v_add_u32 v1, s38, v1
    v_lshrrev_b32 v7, 5, v0       ; h
    v_bfe_u32 v6, v0, 2, 2        ; r = i>>2
    v_lshl_add_u32 v5, v7, 2, v6  ; row = 4h + r
    v_lshlrev_b32 v5, 8, v5       ; *256
    v_and_b32 v4, 1, v0           ; h' = c&1
    v_lshlrev_b32 v4, 2, v4       ; 4h'
    v_bfe_u32 v7, v0, 4, 1        ; G  (g>>1)
    v_or_b32 v4, v4, v7
    s_lshl_b32 s38, s37, 3
    v_or_b32 v4, s38, v4          ; u for b=0
    v_and_b32 v7, 1, v6
    v_lshlrev_b32 v7, 1, v7
    v_xor_b32 v4, v4, v7
    v_lshrrev_b32 v7, 1, v6
    v_lshlrev_b32 v7, 3, v7
    v_xor_b32 v4, v4, v7
    v_bfe_u32 v7, v0, 1, 1        ; g&1
    v_lshl_add_u32 v5, v7, 3, v5
    v_add_u32 v5, 16384, v5
    v_lshl_add_u32 v2, v4, 4, v5
    v_xor_b32 v4, 2, v4
    v_lshl_add_u32 v3, v4, 4, v5
    """)
    ACC = 72
    st = Stamper(a, 6, 1)
    st(0)
    for r in range(ACC, ACC + 64): a(f"v_mov_b32 v{r}, 0")
    F = [8, 40]
    def reads(fs, u):
        r = []
        for kk in range(2):
            ks = 2 * u + kk
            b = F[fs] + 16 * kk
            r.append(f"ds_read_b128 {vr(b,4)}, v1 offset:{ks*1024}")
            r.append(f"ds_read_b64_tr_b16 {vr(b+8,2)}, v2 offset:{ks*4096}")
            r.append(f"ds_read_b64_tr_b16 {vr(b+10,2)}, v2 offset:{ks*4096+2048}")
            r.append(f"ds_read_b64_tr_b16 {vr(b+12,2)}, v3 offset:{ks*4096}")
            r.append(f"ds_read_b64_tr_b16 {vr(b+14,2)}, v3 offset:{ks*4096+2048}")
            r.append(f"ds_read_b128 {vr(b+4,4)}, v1 offset:{4096+ks*1024}")
        return r
    def mfmas(fs):
        m = []
        for kk in range(2):
            b = F[fs] + 16 * kk
            for tt in range(2):
                for bb in range(2):
                    m.append(mfma(ACC + (tt * 2 + bb) * 16, b + 8 + 4 * bb, b + 4 * tt))
        return m
    a("s_mov_b32 s40, 0\ns_mov_b32 s49, 0x8000\ns_barrier")
    st(1)
    for r in reads(0, 0): a(r)
    a(".p2align 6\nL_p_loop:")
    for u in range(2):
        rd = reads(u ^ 1, u ^ 1); mm = mfmas(u)
        a("s_waitcnt lgkmcnt(0)")
        if u == 1:
            a("s_barrier")
            a(mm[0])
            a(f"""
            s_add_u32 s40, s40, 1
            s_and_b32 s41, s40, {PJ_NB-1}
            s_cmp_eq_u32 s41, 0
            s_cselect_b32 s43, {(-(PJ_NB-1)*32768) & 0xffffffff:#x}, s49
            v_add_u32 v1, s43, v1
            v_add_u32 v2, s43, v2
            v_add_u32 v3, s43, v3
            """)
        else:
            a(mm[0])
        a(rd[0]); a(rd[1]); a(rd[2])
        for i in range(1, 8):
            a(mm[i])
            if i < 4:
                a(rd[3 * i]); a(rd[3 * i + 1]); a(rd[3 * i + 2])
    a("s_cmp_lt_u32 s40, 16\ns_cbranch_scc1 L_p_loop")
    st(2)
    SC = OPT["p_sc"]
    a("""
    s_waitcnt lgkmcnt(0)
    s_lshl_b32 s46, s16, 13
    v_and_b32 v1, 31, v0          ; t
    v_lshrrev_b32 v2, 5, v0       ; h'
    v_lshlrev_b32 v2, 2, v2
    v_and_b32 v3, 7, v0
    v_xor_b32 v2, v2, v3          ; (4h') ^ (t&7)
    v_lshlrev_b32 v1, 7, v1
    v_add_u32 v1, s46, v1
    v_lshl_add_u32 v8, v2, 4, v1
    v_xor_b32 v9, 16, v8
    v_xor_b32 v10, 32, v8
    v_xor_b32 v11, 48, v8
    v_lshlrev_b32 v12, 4, v0
    v_add_u32 v12, s46, v12
    s_lshl_b32 s44, s33, 7
    s_lshl_b32 s45, s36, 6
    s_add_u32 s44, s44, s45
    v_lshrrev_b32 v1, 3, v0
    v_xor_b32 v2, v1, v3          ; unit
    v_add_u32 v1, s44, v1
    v_lshlrev_b32 v1, 12, v1
    v_lshl_add_u32 v1, v2, 4, v1
    s_lshl_b32 s44, s32, 11
    s_lshl_b32 s45, s34, 8
    s_add_u32 s44, s44, s45
    s_lshl_b32 s45, s37, 7
    s_add_u32 s44, s44, s45
    """)
    for tt in range(2):
        for bb in range(2):
            d = ACC + (tt * 2 + bb) * 16
            for r in range(8): a(f"v_cvt_pk_bf16_f32 v{d+r}, v{d+2*r}, v{d+2*r+1}")
            a(f"ds_write_b128 v{8+2*bb}, {vr(d,4)} offset:{tt*4096}")
            a(f"ds_write_b128 v{9+2*bb}, {vr(d+4,4)} offset:{tt*4096}")
        a("s_waitcnt lgkmcnt(0)")
        for i in range(4): a(f"ds_read_b128 {vr(16+16*tt+4*i,4)}, v12 offset:{tt*4096+i*1024}")
    for i in range(8):
        a(f"s_waitcnt lgkmcnt({max(0, 7-i) if i >= 4 else 4})")
        a(f"buffer_store_dwordx4 {vr(16+4*i,4)}, v1, s[8:11], s44 offen {SC}")
        a("s_add_u32 s44, s44, 0x8000")
    st(3)
    if STAMP: a("s_waitcnt vmcnt(0)")
    st(4)
    st.flush(1)
    a("s_endpgm")
    a("L_p_loader:")
    a(f"""
    s_sub_u32 s36, s16, 4
    s_lshl_b32 s37, s33, 2
    s_add_u32 s37, s37, s36
    s_lshl_b32 s37, s37, 16
    s_lshl_b32 s38, s32, 22
    s_add_u32 s37, s37, s38
    s_add_u32 s37, s37, {WS_O}
    v_lshlrev_b32 v1, 4, v0
    v_add_u32 v1, s37, v1         ; O voffset
    v_lshrrev_b32 v2, 4, v0       ; r
    v_and_b32 v3, 15, v0          ; p
    v_and_b32 v4, 1, v2
    v_lshlrev_b32 v4, 1, v4
    v_xor_b32 v3, v3, v4
    v_lshrrev_b32 v4, 1, v2
    v_lshlrev_b32 v4, 3, v4
    v_xor_b32 v3, v3, v4          ; u
    s_lshl_b32 s38, s36, 4
    v_add_u32 v2, s38, v2
    v_lshlrev_b32 v2, 11, v2      ; row*2048
    v_lshl_add_u32 v2, v3, 4, v2
    s_lshl_b32 s38, s34, 8
    v_add_u32 v2, s38, v2
    s_lshl_b32 s40, s36, 12       ; lw*4096
    """)
    for j in range(4): a(f"v_add_u32 v{8+j}, {j*4*2048 - j*1024}, v2")
    def ld(s):
        base = (s % PJ_NB) * 32768
        a(f"s_mov_b32 s42, {s*4096}\ns_mov_b32 s43, {s*64*2048}")
        a(f"s_add_u32 m0, s40, {base}\ns_nop 0")
        for j in range(4): a(f"buffer_load_dwordx4 v1, s[12:15], s42 offen offset:{j*1024} lds")
        a(f"s_add_u32 m0, s40, {base+16384}\ns_nop 0")
        for j in range(4): a(f"buffer_load_dwordx4 v{8+j}, s[4:7], s43 offen offset:{j*1024} lds")
    for s in range(OPT["p_pro"]): ld(s)
    issued = OPT["p_pro"]
    for s in range(16):
        a(f"s_waitcnt vmcnt({(issued - 1 - s) * 8})\ns_barrier")
        if issued < 16 and issued <= s + PJ_NB - 1:
            ld(issued); issued += 1
    a("L_p_end:\ns_endpgm")
    return kdesc(K, 136)

def main():
    global STAMP
    if "--stamp" in sys.argv:
        STAMP = True; sys.argv.remove("--stamp")
    for arg in list(sys.argv[1:]):
        if "=" in arg:
            k, v = arg.split("=", 1); OPT[k] = type(OPT[k])(v.replace("+", " ")); sys.argv.remove(arg)
    a = Asm()
    hdr = open("cdna_kernels/%s.s.ref" % NAME).read().split("\n")
    head = [l for l in hdr if l.startswith(";") and "@launch" not in l and "Override" not in l and "grid=ceil" not in l]
    txt = "\n".join(head) + "\n"
    txt += f"; @launch kernel=fused_kernel grid=(256,1,1) block=(512,1,1) lds={G2_LDS}\n"
    txt += f"; @launch kernel=proj_kernel grid=(256,1,1) block=(512,1,1) lds={PJ_LDS}\n"
    txt += '.amdgcn_target "amdgcn-amd-amdhsa--gfx950"\n.text\n'
    d = [gen_fused(a), gen_proj(a)]
    a("L_code_end:")
    txt += a.text()
    txt += '.section .rodata,"a"\n' + "".join(d)
    out = sys.argv[1] if len(sys.argv) > 1 else OUT
    open(out, "w").write(txt)
    print("wrote", out, len(txt))

if __name__ == "__main__":
    main()
```

```python
import sys, math, struct

NAME = "concat_heads__sliding_block__mha_block__prompt"
OUT = "cdna_kernels/%s.s" % NAME

def f32(x): return struct.unpack("<I", struct.pack("<f", x))[0]

class Asm:
    def __init__(self): self.l = []
    def __call__(self, s):
        for line in s.strip("\n").split("\n"):
            line = line.strip()
            if not line: continue
            self.l.append(line if line.endswith(":") or line.startswith(".") else "    " + line)
    def text(self): return "\n".join(self.l) + "\n"

def vr(a, n): return "v[%d:%d]" % (a, a + n - 1)
def sr(a, n): return "s[%d:%d]" % (a, a + n - 1)

MB = 1 << 20
OPT = dict(q_sc="sc1", a_sc="sc1", p_sc="sc1", ws_off=0, q_lead=3, q_touch=1, p_pro=2, icp=1, h_ld="sc1", yprio=2, thr=9, xsleep=4, ysleep=32, nring=10, ykill=0, xdyn=0, wot=1, ydelay=60, xprio=3)
WS_Q, WS_KV, WS_O, WS_SIZE = 0, 8 * MB, 24 * MB, 34 * MB
WS_GEN = 1 * MB
WS_FL = 0

def srd(a, s, lo, hi, size):
    if lo == "s28" and OPT["ws_off"]:
        a(f"s_add_u32 s28, s28, {OPT['ws_off']*MB:#x}\ns_addc_u32 s29, s29, 0")
    a(f"""
    s_mov_b32 s{s}, {lo}
    s_mov_b32 s{s+1}, {hi}
    s_mov_b32 s{s+2}, {size:#x}
    s_mov_b32 s{s+3}, 0x00020000
    """)

def kstart(a, name):
    a(f"""
    .globl {name}
    .p2align 8
    .type {name},@function
    {name}:
    """)

def kdesc(name, nfv, nsgpr=102):
    acc = (nfv + 3) // 4 * 4
    return f"""
.p2align 6
.amdhsa_kernel {name}
  .amdhsa_next_free_vgpr {nfv}
  .amdhsa_next_free_sgpr {nsgpr}
  .amdhsa_accum_offset {acc}
  .amdhsa_group_segment_fixed_size 0
  .amdhsa_kernarg_size 72
  .amdhsa_user_sgpr_count 2
  .amdhsa_user_sgpr_kernarg_segment_ptr 1
  .amdhsa_system_sgpr_workgroup_id_x 1
.end_amdhsa_kernel
"""

STAMP = False
class Stamper:
    def __init__(self, a, vreg, kidx): self.a, self.v, self.k = a, vreg, kidx
    def __call__(self, n):
        if not STAMP: return
        self.a(f"""
        s_memtime s[96:97]
        s_memrealtime s[98:99]
        s_waitcnt lgkmcnt(0)
        v_writelane_b32 v{self.v}, s96, {n}
        v_writelane_b32 v{self.v}, s98, {32+n}
        """)
    def dyn(self, sidx, mul, add):
        if not STAMP: return
        self.a(f"""
        s_memtime s[96:97]
        s_mul_i32 s98, {sidx}, {mul}
        s_add_u32 m0, s98, {add}
        s_waitcnt lgkmcnt(0)
        v_writelane_b32 v{self.v}, s96, m0
        """)
    def flush(self, tmp, lane="v0"):
        if not STAMP: return
        self.a(f"""
        s_lshl_b32 s96, s2, 3
        s_add_u32 s96, s96, s16
        s_lshl_b32 s96, s96, 8
        s_add_u32 s96, s96, {WS_SIZE - 2*MB + self.k * 512 * 1024}
        v_lshlrev_b32 v{tmp}, 2, {lane}
        buffer_store_dword v{self.v}, v{tmp}, s[12:15], s96 offen
        """)

def mfma(d, A, B, C=None):
    c = vr(d, 16) if C is None else (C if isinstance(C, str) else vr(C, 16))
    return f"v_mfma_f32_32x32x16_bf16 {vr(d,16)}, {vr(A,4)}, {vr(B,4)}, {c}"

G2_SLOT = 40960
G2_LDS = 163840
FLAGS = 159 * 1024
XSCR = 120 * 1024
R_OFF = 64.0
T_HI = 2.0 ** 48
SPIN_MAX = 1 << 18

def mfma16(d, A, B):
    return f"v_mfma_f32_16x16x32_bf16 {vr(d,4)}, {vr(A,4)}, {vr(B,4)}, {vr(d,4)}"

def upper_mask(r):
    m = 0
    for l in range(64):
        if r + 16 * (l >> 5) > (l & 31): m |= 1 << l
    return m

def gen_fused(a):
    K = "fused_kernel"
    kstart(a, K)
    NR = OPT["nring"]
    VLANE, T0, T1, IDX, T2, VCNT = 1, 2, 3, 4, 5, 6
    AS = 8; S = [16, 32]
    OO = [48, 64, 80, 96]; NN = [112, 128, 144, 232]; QQ = [160, 168, 176, 184]; F0 = 192
    LL = [12, 248, 250, 252]
    VFL, VONE = 254, 255
    O, L, QF, KF, VA, VB, NM, MK = OO[2], 228, QQ[2], F0, F0 + 8, F0 + 12, NN[0], NN[1]
    VK, VKN = 208, 209
    DX, DW, DT = 232, 236, 242
    assert NR <= 10
    NINF = 0xff800000
    HL = OPT["h_ld"]; THR = OPT["thr"]; SC = OPT["q_sc"]; ASC = OPT["a_sc"]
    st = Stamper(a, 7, 0)
    a(f"""
    s_cmp_ge_u32 s2, 256
    s_cbranch_scc1 L_f_end
    s_load_dwordx4 s[20:23], s[0:1], 0
    s_load_dwordx2 s[24:25], s[0:1], 24
    s_load_dwordx2 s[26:27], s[0:1], 32
    s_load_dwordx2 s[28:29], s[0:1], 64
    s_load_dwordx2 s[18:19], s[0:1], 56
    v_lshrrev_b32 v1, 6, v0
    v_and_b32 v0, 63, v0
    s_and_b32 s30, s2, 7          ; xcd
    s_lshr_b32 s31, s2, 3         ; idx
    v_readfirstlane_b32 s16, v1
    s_and_b32 s33, s30, 1
    s_lshl_b32 s33, s33, 3
    s_and_b32 s34, s31, 7
    s_add_u32 s33, s33, s34       ; mt (0..15)
    s_lshr_b32 s34, s30, 1
    s_lshl_b32 s34, s34, 2
    s_lshr_b32 s35, s31, 3
    s_add_u32 s34, s34, s35       ; nt (0..15)
    s_and_b32 s59, s16, 3
    v_mov_b32 v{VONE}, 1
    s_cmp_lt_u32 s16, 4
    s_cbranch_scc1 L_x
    """)

    def flag_base(kind, spos):
        a(f"""
        s_lshl_b32 s49, s34, 2
        s_add_u32 s49, s49, s59
        s_lshl_b32 s49, s49, 11
        s_add_u32 s49, s49, {WS_FL + kind * 131072}
        s_lshl_b32 s32, {spos}, 7
        s_add_u32 s32, s32, s49
        """)
    def get_nonce():
        a(f"""
        v_mov_b32 v{T0}, {FLAGS + 768}
        ds_read_b64 {vr(T0,2)}, v{T0}
        s_waitcnt lgkmcnt(0)
        v_readfirstlane_b32 s62, v{T0}
        v_readfirstlane_b32 s63, v{T1}
        """)
    def publish():
        a(f"""
        v_lshrrev_b32 v{VCNT}, 1, v{VLANE}
        v_mov_b32 v{T0}, s62
        v_mov_b32 v{T1}, s63
        s_mov_b64 exec, 0xffff
        buffer_store_dwordx2 {vr(T0,2)}, v{VCNT}, s[12:15], s32 offen sc1
        s_mov_b64 exec, -1
        """)
    def poll(tag, sneed, sleep):
        a(f"""
        s_mov_b32 s100, {SPIN_MAX}
        L_poll_{tag}:
        v_lshlrev_b32 v{T0}, 3, v{VLANE}
        s_mov_b64 exec, 0xffff
        buffer_load_dwordx2 {vr(T0,2)}, v{T0}, s[12:15], s49 offen sc1
        s_waitcnt vmcnt(0)
        v_cmp_eq_u64 vcc, s[62:63], {vr(T0,2)}
        s_mov_b64 exec, -1
        s_nop 3
        s_or_b32 s56, s56, vcc_lo
        s_and_b32 s101, s56, {sneed}
        s_cmp_eq_u32 s101, {sneed}
        s_cbranch_scc1 L_polld_{tag}
        s_sleep {sleep}
        s_sub_u32 s100, s100, 1
        s_cbranch_scc0 L_poll_{tag}
        L_polld_{tag}:
        """)
    def attn_consts(masks):
        a(f"""
        s_mov_b32 s46, {f32(T_HI):#x}
        s_mov_b32 s47, {f32(R_OFF):#x}
        v_mov_b32 v{IDX}, 0xdddddddd
        v_and_b32 v{T0}, 7, v0
        v_mov_b32 v{T1}, 0x3f803f80
        v_cmp_eq_u32 vcc, 0, v{T0}
        v_mov_b32 v{T2}, {NINF:#x}
        s_nop 0
        v_cndmask_b32 v{AS}, 0, v{T1}, vcc
        v_cndmask_b32 v{AS+1}, 0, v{T1}, vcc
        v_cmp_eq_u32 vcc, 4, v{T0}
        s_nop 1
        v_cndmask_b32 v{AS+2}, 0, v{T1}, vcc
        v_cndmask_b32 v{AS+3}, 0, v{T1}, vcc
        """)
        if masks:
            for r in range(16):
                m = upper_mask(r)
                a(f"s_mov_b32 s{64+2*r}, {m & 0xffffffff:#x}\ns_mov_b32 s{65+2*r}, {m >> 32:#x}")
    def zero_acc():
        for r in range(16): a(f"v_mov_b32 v{O+r}, 0")
        for r in range(4): a(f"v_mov_b32 v{L+r}, 0")
    def arrive(n): return [f"ds_add_u32 v{VFL}, v{VONE}", f"s_add_u32 s48, s48, {n}"]
    RDCNT = f"ds_read_b32 v{VCNT}, v{VFL}"
    def spin_lds(tag, sleep=1):
        a(f"""
        s_mov_b32 s100, {SPIN_MAX * 16}
        L_spin_{tag}:
        ds_read_b32 v{VCNT}, v{VFL}
        s_waitcnt lgkmcnt(0)
        v_cmp_le_u32 vcc, s48, v{VCNT}
        s_cbranch_vccnz L_spind_{tag}
        s_sleep {sleep}
        s_sub_u32 s100, s100, 1
        s_cbranch_scc0 L_spin_{tag}
        L_spind_{tag}:
        """)
    def group_sync(tag, n, sleep=1):
        for op in arrive(n): a(op)
        spin_lds(tag, sleep)
    ool = []

    c = math.log2(math.e) / math.sqrt(32.0)
    def gemm_setup(slot0, part, spos):
        a(f"""
        s_lshr_b32 s36, s59, 1        ; wm
        s_and_b32 s37, s59, 1         ; wh
        v_and_b32 v6, 15, v0          ; t
        v_lshrrev_b32 v8, 4, v0       ; g
        v_bfe_u32 v5, v0, 1, 3        ; f = (t>>1)&7
        v_lshlrev_b32 v6, 7, v6       ; t*128
        s_lshl_b32 s38, s36, 13
        s_add_u32 s38, s38, {slot0}
        v_add_u32 v6, s38, v6         ; + wm*8192
        v_xor_b32 v1, v8, v5
        v_xor_b32 v2, 4, v1
        v_lshl_add_u32 v1, v1, 4, v6
        v_lshl_add_u32 v2, v2, 4, v6
        v_lshrrev_b32 v6, 5, v0       ; g>>1
        s_mov_b32 s39, 6144
        v_mul_lo_u32 v6, v6, s39
        v_and_b32 v8, 1, v8           ; g&1
        v_bfe_u32 v5, v0, 2, 2        ; r = i>>2
        v_lshl_add_u32 v5, v8, 3, v5  ; 8(g&1) + r
        v_lshl_add_u32 v6, v5, 7, v6
        v_and_b32 v5, 3, v0
        v_lshl_add_u32 v6, v5, 3, v6  ; + (i&3)*8
        v_add_u32 v6, {16384 + slot0}, v6
        v_bfe_u32 v5, v0, 3, 1        ; (r>>1)&1
        v_lshl_or_b32 v5, v8, 1, v5   ; swz
        s_lshl_b32 s38, s37, 1
        v_xor_b32 v5, s38, v5
        v_lshl_add_u32 v3, v5, 5, v6
        v_xor_b32 v5, 1, v5
        v_lshl_add_u32 v4, v5, 5, v6
        s_lshl_b32 s44, s34, 1
        s_add_u32 s44, s44, s37       ; head
        s_lshl_b32 s44, s44, 6
        s_lshl_b32 s45, {spos}, 2
        s_add_u32 s44, s44, s45
        s_lshl_b32 s45, s36, 1
        s_add_u32 s44, s44, s45
        s_lshl_b32 s65, s44, 12
        s_add_u32 s65, s65, {WS_KV + part*8*MB}
        s_mov_b32 s67, {f32(c):#x}
        v_and_b32 v5, 15, v0
        v_lshrrev_b32 v6, 4, v0
        v_lshlrev_b32 v5, 4, v5
        v_lshl_add_u32 v5, v6, 9, v5  ; g*512 + (l&15)*16
        s_mov_b32 s17, 0
        s_mov_b32 s48, 0
        """)
        for r in range(64, 160): a(f"v_mov_b32 v{r}, 0")
    XF = [8, 24]; WF = 40
    def acc(t, s):
        sec, cb = s >> 1, s & 1
        if sec < 2: return 64 + ((t * 2 + sec) * 2 + cb) * 4
        return 128 + (((t >> 1) * 2 + cb) * 2 + (t & 1)) * 4
    def rdx(buf, t, ks): return f"ds_read_b128 {vr(XF[buf]+4*t,4)}, v{1+ks} offset:{t*2048}"
    def rdw(s, half, ks):
        sec, cb = s >> 1, s & 1
        return f"ds_read_b64_tr_b16 {vr(WF+4*s+2*half,2)}, v{3+cb} offset:{ks*12288+sec*2048+half*512}"
    def relayout(qbase, kvbase, kvstep, qdst, nq_now):
        a(f"""
        s_waitcnt lgkmcnt(0)
        v_lshlrev_b32 v{VLANE}, 4, v0
        v_add_u32 v8, {qbase}, v5
        v_add_u32 v9, {kvbase}, v5
        v_and_b32 v10, 3, v0
        v_bfe_u32 v11, v0, 2, 2
        v_lshl_add_u32 v10, v11, 3, v10
        v_lshrrev_b32 v11, 4, v0
        v_lshlrev_b32 v10, 4, v10
        v_lshl_add_u32 v10, v11, 9, v10
        v_add_u32 v10, {kvbase}, v10
        v_add_u32 v11, {kvbase}, v{VLANE}
        """)
        for T in range(2):
            for tl in range(2):
                d = acc(2 * T + tl, 2)
                for r in range(4): a(f"v_cvt_pk_bf16_f32 v{d+r}, v{d+2*r}, v{d+2*r+1}")
                a(f"ds_write_b128 v10, {vr(d,4)} offset:{T*kvstep+tl*64}")
            for cb in range(2):
                d = acc(2 * T, 4 + cb)
                for r in range(4): a(f"v_cvt_pk_bf16_f32 v{d+r}, v{d+2*r}, v{d+2*r+1}")
                a(f"ds_write_b128 v9, {vr(d,4)} offset:{T*kvstep+2048+cb*256}")
            for k in range(4): a(f"ds_read_b128 {vr(F0+16*T+4*k,4)}, v11 offset:{T*kvstep+k*1024}")
        for t in range(4):
            d = acc(t, 0)
            for r in range(8): a(f"v_mul_f32 v{d+r}, s67, v{d+r}")
            for r in range(4): a(f"v_cvt_pk_bf16_f32 v{d+r}, v{d+2*r}, v{d+2*r+1}")
            a(f"ds_write_b128 v8, {vr(d,4)} offset:{(t>>1)*2048+(t&1)*256}")
            if t == 0:
                a("s_add_u32 s66, s65, 4096\ns_waitcnt lgkmcnt(1)")
                for T in range(2):
                    for k in range(4):
                        a(f"buffer_store_dwordx4 {vr(F0+16*T+4*k,4)}, v{VLANE}, s[12:15], s{65+T} offen offset:{k*1024} {SC}")
        a(f"v_add_u32 v11, {qbase}, v{VLANE}")
        for k in range(2 * nq_now): a(f"ds_read_b128 {vr(qdst+4*k,4)}, v11 offset:{k*1024}")
    BAR = 24 + 8
    RS = {}
    def put(i, op): RS.setdefault(i, []).append(op)
    put(0, ("w", 5, 0, rdw(5, 1, 0)))
    for s_ in range(6):
        put(4 * s_ + 3, ("w", s_, 1, rdw(s_, 0, 1))); put(4 * s_ + 4, ("w", s_, 1, rdw(s_, 1, 1)))
    for t in range(4): put(1 + 4 * t, ("x", t, 1, rdx(1, t, 1)))
    order = [("w", 0, 0, rdw(0, 0, 0)), ("w", 0, 0, rdw(0, 1, 0))] + [("x", t, 0, rdx(0, t, 0)) for t in range(4)]
    for s_ in range(1, 6): order += [("w", s_, 0, rdw(s_, 0, 0)), ("w", s_, 0, rdw(s_, 1, 0))]
    pos = BAR + 1
    for op in order[:-1]:
        if op[0] == "w": pos = max(pos, 24 + 4 * op[1] + 3)
        assert pos <= 47
        put(pos, op); pos += 1
    def steady(): return [op[:3] for op in order[:-1]][3:]
    def first_frags():
        for t in range(4): a(rdx(0, t, 0))
        for s in range(6):
            a(rdw(s, 0, 0)); a(rdw(s, 1, 0))
        a("s_waitcnt lgkmcnt(0)")
    VADV = ["v_add_u32 v3, s3, v3", "v_add_u32 v1, s3, v1", "v_add_u32 v4, s3, v4", "v_add_u32 v2, s3, v2"]
    def stage(MISC):
        LQ = steady()
        for i in range(48):
            ks, s_, t = i // 24, (i % 24) >> 2, i & 3
            x, w = XF[ks] + 4 * t, WF + 4 * s_
            a(mfma16(acc(t, s_), w, x) if s_ < 4 else mfma16(acc(t, s_), x, w))
            n = (i + 1) % 48
            need = [("w", (n % 24) >> 2, n // 24), ("x", n & 3, n // 24)]
            idx = [j for j, e in enumerate(LQ) if e in need]
            if idx:
                a(f"s_waitcnt lgkmcnt({len(LQ) - 1 - max(idx)})")
                del LQ[:max(idx) + 1]
            for op in RS.get(i, []):
                a(op[3]); LQ.append(op[:3])
            for op in MISC.get(i, []):
                a(op)
                if "lgkmcnt(0)" in op: LQ.clear()
                elif op.startswith("ds_"): LQ.append(("f", 0, 0))
        assert LQ == steady()

    LEAD = OPT["q_lead"]
    def loader_setup():
        a(f"""
        v_lshrrev_b32 v1, 3, v0       ; l>>3
        v_and_b32 v2, 7, v0           ; l&7
        v_lshrrev_b32 v3, 4, v0       ; l>>4
        s_lshl_b32 s37, s33, 7
        s_lshl_b32 s38, s59, 5
        s_add_u32 s37, s37, s38
        v_add_u32 v4, s37, v1
        v_lshlrev_b32 v4, 11, v4      ; row*2048
        v_xor_b32 v5, v2, v3
        v_xor_b32 v6, 4, v5
        v_lshl_add_u32 v{DX}, v5, 4, v4
        v_lshl_add_u32 v6, v6, 4, v4
        """)
        for n in range(1, 4):
            a(f"v_add_u32 v{DX+n}, {n*16384 - n*1024}, v{6 if n & 1 else DX}")
        a("""
        s_lshl_b32 s38, s59, 4
        v_add_u32 v4, s38, v1
        s_mov_b32 s39, 6144
        v_mul_lo_u32 v4, v4, s39
        v_and_b32 v3, 1, v3
        v_lshlrev_b32 v3, 1, v3
        v_xor_b32 v5, v2, v3          ; jj = 0
        v_xor_b32 v6, 4, v5           ; jj = 1
        s_lshl_b32 s38, s34, 7        ; nt*128
        v_add_u32 v4, s38, v4
        v_lshl_add_u32 v5, v5, 4, v4
        v_lshl_add_u32 v6, v6, 4, v4
        """)
        for sec in range(3):
            for jj in range(2):
                p = sec * 2 + jj
                a(f"v_add_u32 v{DW+p}, {sec*2048 + jj*8*6144 - (p % 3)*1024}, v{5+jj}")
        a("""
        s_lshl_b32 s40, s59, 12
        s_mul_i32 s41, s59, 6144
        s_add_u32 s41, s41, 16384     ; W lds
        s_add_u32 s58, s34, s33
        s_and_b32 s58, s58, 3         ; class
        """)
        LEAD = OPT["q_lead"]
        def korder(c_, first):
            pref = ([(c_ + i) & 3 for i in range(4)] + list(range(4, 16))) if first else list(range(16))
            seq = []
            for p in range(16):
                if (p >= 1 or not first) and (p & 3) == c_ and p + LEAD <= 15 and (p + LEAD) not in seq: k = p + LEAD
                else: k = next(x for x in pref if x not in seq)
                seq.append(k)
            assert sorted(seq) == list(range(16))
            return seq
        tabs = []
        for c_ in range(4):
            seq = korder(c_, True) + korder(c_, False)
            tabs.append([sum(seq[8 * w + i] << (4 * i) for i in range(8)) for w in range(4)])
        for w in range(4): a(f"s_mov_b32 s{60+w}, {tabs[0][w]:#x}")
        for c_ in range(1, 4):
            a(f"s_cmp_eq_u32 s58, {c_}")
            for w in range(4): a(f"s_cselect_b32 s{60+w}, {tabs[c_][w]:#x}, s{60+w}")

    loader_setup()
    a("s_waitcnt lgkmcnt(0)")
    srd(a, 4, "s24", "s25", 2048 * 1024 * 2)
    srd(a, 8, "s26", "s27", 1024 * 3072 * 2)
    DMA = [f"buffer_load_dwordx4 v{DX+n}, s[4:7], s42 offen offset:{n*1024} lds" for n in range(4)] + \
          [f"buffer_load_dwordx4 v{DW+p}, s[8:11], s43 offen offset:{(p%3)*1024} lds" for p in range(6)]
    def ld(s):
        base = (s % 3) * G2_SLOT
        if s == 16:
            a("s_mov_b32 s4, s20\ns_mov_b32 s5, s21\ns_mov_b32 s8, s22\ns_mov_b32 s9, s23")
        a(f"""
        s_bfe_u32 s44, s{60 + s // 8}, {(4 << 16) | (4 * (s % 8)):#x}
        s_add_u32 m0, s40, {base}
        s_lshl_b32 s42, s44, 7
        s_mul_i32 s43, s44, {64*6144}
        """)
        for i in range(10):
            if i == 4: a(f"s_add_u32 m0, s41, {base}\ns_nop 0")
            if i == 7: a(f"s_add_u32 m0, s41, {base+3072}\ns_nop 0")
            a(DMA[i])
    srd(a, 12, "s28", "s29", WS_SIZE)
    ld(0); ld(1)
    TCH = OPT["q_touch"]
    if TCH:
        a(f"""
        v_mul_lo_u32 v{DT}, v0, s39
        s_lshl_b32 s50, s59, 11
        s_add_u32 s50, s50, s38
        v_add_u32 v{DT}, s50, v{DT}
        s_lshl_b32 s51, s33, 7
        v_add_u32 v{DT+1}, s51, v0
        v_lshlrev_b32 v{DT+1}, 11, v{DT+1}
        s_cmp_eq_u32 s59, 3
        s_cselect_b32 s52, s20, s22
        s_cselect_b32 s53, s21, s23
        s_cselect_b32 s54, s6, s10
        s_mov_b32 s55, 0x00020000
        s_mov_b32 s51, {64*6144}
        s_cselect_b32 s51, 128, s51
        s_cselect_b32 s56, {64*2048}, 0
        s_cselect_b64 vcc, -1, 0
        v_cndmask_b32 v{DT}, v{DT}, v{DT+1}, vcc
        """)
    q = [0] * 10 + [1] * 10
    VE, VEO = 248, DT + 3
    for s in range(17):
        last = max(i for i, x in enumerate(q) if x == s)
        a(f"s_waitcnt vmcnt({len(q) - 1 - last})")
        if s == 11:
            a(f"""
            s_cmp_lg_u32 s16, 4
            s_cbranch_scc1 L_ent_done
            s_mov_b32 s100, {SPIN_MAX}
            L_ent:
            v_cmp_ne_u32 vcc, 0, v{VE+2}
            s_cbranch_vccnz L_ent_ok
            s_sleep 16
            global_load_dwordx4 {vr(VE,4)}, v{VEO}, s[18:19] sc1
            s_waitcnt vmcnt(0)
            s_sub_u32 s100, s100, 1
            s_cbranch_scc0 L_ent
            L_ent_ok:
            v_mov_b32 v{VEO}, {FLAGS + 768}
            ds_write_b64 v{VEO}, {vr(VE,2)}
            s_waitcnt lgkmcnt(0)
            L_ent_done:
            """)
        a("s_barrier")
        if STAMP: a(f"s_memtime s[96:97]\ns_waitcnt lgkmcnt(0)\nv_writelane_b32 v7, s96, {8+s}")
        q = q[last + 1:]
        p = s + 2
        if s == 9:
            a(f"""
            v_mov_b32 v{VEO}, 0
            s_cmp_lg_u32 s16, 4
            s_cbranch_scc1 L_ent_skip
            global_load_dwordx4 {vr(VE,4)}, v{VEO}, s[18:19] sc1
            L_ent_skip:
            """)
        if TCH and 16 - LEAD <= p < 16:
            a(f"""
            s_cmp_lg_u32 s58, {p & 3}
            s_cbranch_scc1 L_q_nt{p}
            s_mul_i32 s50, s51, {p + LEAD - 16}
            buffer_load_dword v{DT+2}, v{DT}, s[52:55], s50 offen
            s_add_u32 s50, s50, s56
            buffer_load_dword v{DT+2}, v{DT}, s[52:55], s50 offen
            L_q_nt{p}:
            """)
        if s == 16:
            st(2)
            if OPT["ykill"]: a("s_endpgm")
            a(f"s_setprio {OPT['yprio']}")
            for t in range(4): a(rdx(0, t, 0))
            for s_ in range(6):
                a(rdw(s_, 0, 0)); a(rdw(s_, 1, 0))
        ld(p); q += [p] * 10
        if s == 3:
            gemm_setup(G2_SLOT, 0, "s33")
            a(f"v_lshlrev_b32 v{VFL}, 2, v0\nv_add_u32 v{VFL}, {FLAGS + 512}, v{VFL}")
    a(f"""
    s_lshr_b64 s[62:63], s[62:63], 12
    s_mov_b32 s31, {G2_SLOT}
    s_mov_b32 s45, 1
    s_mov_b32 s57, {G2_SLOT}
    s_waitcnt lgkmcnt(0)
    """)
    ROT = [["s_add_u32 s17, s17, 1", "s_add_u32 s45, s45, 1"],
           ["s_cmp_eq_u32 s45, 3", f"s_cselect_b32 s3, {(-2*G2_SLOT) & 0xffffffff:#x}, s31"],
           ["s_cselect_b32 s45, 0, s45", VADV[0]], VADV[1:3], VADV[3:]]
    def ymisc(tag, dma, endcmp):
        M = {}
        def add(i, ops): M.setdefault(i, []).extend(ops)
        for i, ops in enumerate(ROT): add(25 + i, ops)
        add(29, [f"s_waitcnt vmcnt({10 if dma else 0}) lgkmcnt(0)"] + arrive(4))
        add(30, [RDCNT])
        add(32, ["s_waitcnt lgkmcnt(0)", f"v_cmp_gt_u32 vcc, s48, v{VCNT}", f"s_cbranch_vccnz L_ys_{tag}", f"L_ysd_{tag}:"])
        def o(tag=tag):
            a(f"L_ys_{tag}:"); spin_lds("y" + tag); a(f"s_branch L_ysd_{tag}")
        ool.append(o)
        if dma:
            add(31, ["s_and_b32 s44, s62, 15", "s_lshr_b64 s[62:63], s[62:63], 4", "s_lshl_b32 s42, s44, 7", f"s_mul_i32 s43, s44, {64*6144}",
                     "s_add_u32 m0, s40, s57"])
            pos = 33
            for i in range(10):
                if i == 4: add(pos, ["s_add_u32 s50, s41, s57", "s_mov_b32 m0, s50"]); pos += 1
                if i == 7: add(pos, ["s_add_u32 m0, s50, 3072"]); pos += 1
                add(pos, ([f"s_waitcnt vmcnt({THR})"] if THR < 20 else []) + [DMA[i]]); pos += 1
            add(45, ["s_add_u32 s57, s57, s3"])
        add(46, [endcmp])
        return M
    a(".p2align 6\nL_y_loop:")
    stage(ymisc("a", True, "s_cmp_lt_u32 s17, 13"))
    a("s_cbranch_scc1 L_y_loop")
    a(".p2align 6\nL_y_loop2:")
    stage(ymisc("b", False, "s_cmp_lt_u32 s17, 16"))
    a("s_cbranch_scc1 L_y_loop2")
    st(3)
    a(f"""
    s_mul_i32 s38, s37, 49152
    s_lshl_b32 s39, s36, 13
    s_add_u32 s39, s39, s38       ; + wm*8192
    s_add_u32 s40, s39, 32768
    s_lshl_b32 s41, s59, 12
    s_add_u32 s41, s41, {96*1024}
    s_load_dwordx2 s[20:21], s[0:1], 16
    s_load_dwordx2 s[22:23], s[0:1], 40
    """)
    relayout("s41", "s40", 4096, QQ[0], 2)
    a("s_setprio 0")
    a("s_mov_b32 s42, s65")
    get_nonce()
    flag_base(0, "s33")
    attn_consts(True)
    a(f"""
    s_lshl_b32 s50, 1, s33
    s_lshr_b32 s51, s50, 1
    s_lshr_b32 s50, s50, 2
    s_or_b32 s51, s51, s50
    s_mov_b32 s56, 0
    s_waitcnt vmcnt(0)
    """)
    publish()
    st(4)
    a(f"""
    s_and_b32 s50, s2, 127
    s_lshl_b32 s50, s50, 2
    s_add_u32 s50, s50, s59
    s_lshl_b32 s50, s50, 12
    v_lshlrev_b32 v{VK}, 6, v0
    s_cmp_lt_u32 s2, 128
    s_cselect_b32 s4, s20, s22
    s_cselect_b32 s5, s21, s23
    s_mov_b32 s6, {1024*1024*2:#x}
    s_mov_b32 s7, 0x00020000
    """)
    if OPT["wot"]: a(f"buffer_load_dword v{VK}, v{VK}, s[4:7], s50 offen")
    if OPT["ydelay"]: a(f"s_sleep {OPT['ydelay']}")
    poll("a", "s51", OPT["ysleep"])
    st(5)
    for g in (1, 2):
        a(f"s_cmp_lt_u32 s33, {g}\ns_cbranch_scc1 L_y_nowin")
        for T in range(2):
            a(f"s_add_u32 m0, s39, {(8 - 4*g + T) * 4096}\ns_sub_u32 s50, s42, {g*16384 - T*4096}")
            for k in range(4): a(f"buffer_load_dwordx4 v{VLANE}, s[12:15], s50 offen offset:{k*1024} {HL} lds")
    a(f"""
    L_y_nowin:
    s_lshl_b32 s58, s33, 2
    s_lshl_b32 s50, s36, 1
    s_add_u32 s58, s58, s50
    s_lshl_b32 s41, s58, 5
    s_lshl_b32 s50, s34, 1
    s_add_u32 s41, s41, s50
    s_add_u32 s41, s41, s37
    s_lshl_b32 s41, s41, 11
    s_add_u32 s41, s41, {WS_O}    ; O offset
    s_mov_b32 s43, 0
    s_waitcnt vmcnt(0) lgkmcnt(0)
    """)
    for r in range(8): a(f"v_mov_b32 v{QF+r}, v{QQ[0]+r}")
    group_sync("y3", 4, 4)
    a(f"s_setprio {OPT['yprio']}")
    st(6)

    def sm32(d, A, B): return f"v_smfmac_f32_32x32x32_bf16 {vr(d,16)}, {vr(A,4)}, {vr(B,8)}, v{IDX}"
    def sm16(d, A, B): return f"v_smfmac_f32_16x16x64_bf16 {vr(d,4)}, {vr(A,4)}, {vr(B,8)}, v{IDX}"
    def rowmax_negm(s, nm):
        a(f"v_max3_f32 v{T0}, v{s}, v{s+1}, v{s+2}")
        for r in range(3, 15, 2): a(f"v_max3_f32 v{T0}, v{T0}, v{s+r}, v{s+r+1}")
        a(f"""
        v_max_f32 v{T0}, v{T0}, v{s+15}
        v_mov_b32 v{T1}, v{T0}
        s_nop 1
        v_permlane32_swap_b32 v{T0}, v{T1}
        s_nop 1
        v_max_f32 v{T0}, v{T0}, v{T1}
        v_add_f32 v{T0}, s47, v{T0}
        v_sub_f32 v{nm}, 0, v{T0}
        """)
        for r in range(1, 16): a(f"v_mov_b32 v{nm+r}, v{nm}")
    def normalise_store(o, l, pk, ooff, tag, slow_args):
        a(f"v_mul_f32 v{T0}, 0, v{l}")
        for r in range(16): a(f"v_fma_f32 v{T0}, v{o+r}, 0, v{T0}")
        a(f"""
        v_rcp_f32 v{T1}, v{l}
        v_cmp_u_f32 vcc, v{T0}, v{T0}
        s_nop 1
        s_cbranch_vccz L_ok_{tag}
        {slow_args}
        s_call_b64 s[52:53], L_slow
        """)
        if o != O:
            for r in range(16): a(f"v_mov_b32 v{o+r}, v{O+r}")
        a(f"v_rcp_f32 v{T1}, v{L}\ns_nop 0\nL_ok_{tag}:")
        for r in range(16): a(f"v_mul_f32 v{o+r}, v{T1}, v{o+r}")
        for r in range(8): a(f"v_cvt_pk_bf16_f32 v{pk+r}, v{o+2*r}, v{o+2*r+1}")
        a(f"""
        buffer_store_dwordx4 {vr(pk,4)}, v{VLANE}, s[12:15], {ooff} offen {ASC}
        buffer_store_dwordx4 {vr(pk+4,4)}, v{VLANE}, s[12:15], {ooff} offen offset:1024 {ASC}
        """)

    rescue_sites = []
    def tile_iter(i, q, rdVb, rdK, rdVa, first=False, cblk=NM, pre_qk=None, do_qk=True, chk=None):
        s, sp = S[i & 1], S[(i + 1) & 1]
        e = [f"v_exp_f32 v{s+r}, v{s+r}" for r in range(16)]
        a(e[0]); a(e[1])
        if not first: a(sm32(O, VB, sp + 8))
        a(rdVb)
        a(e[2]); a(e[3]); a(e[4])
        if not first: a(sm16(L, AS, sp + 8))
        a("s_waitcnt lgkmcnt(3)")
        if pre_qk: pre_qk()
        a(e[5])
        if do_qk: a(mfma(sp, KF, q, cblk))
        a("s_waitcnt lgkmcnt(2)")
        a(rdK[0])
        a(e[6]); a(e[7]); a(e[8])
        if do_qk: a(mfma(sp, KF + 4, q + 4))
        a("s_waitcnt lgkmcnt(2)")
        a(rdK[1])
        a(e[9]); a(e[10]); a(e[11])
        a(sm32(O, VA, s))
        a(rdVa)
        a(e[12]); a(e[13])
        if chk: a(f"v_cmp_lt_f32 vcc, s46, v{L}")
        a(e[14])
        a(sm16(L, AS, s))
        a("s_waitcnt lgkmcnt(3)")
        if chk:
            a(f"s_cbranch_vccnz L_resc_{chk}")
            a(f"L_back_{chk}:")
            rescue_sites.append((i & 1, chk))
        a(e[15])
    a("L_ya_unit:")
    zero_acc()
    a(f"""
    v_add_u32 v{VK}, s39, v{VLANE}
    s_add_u32 s45, s58, 1
    s_cmp_lt_u32 s58, 8
    s_cselect_b32 s45, s45, 99
    s_cmp_eq_u32 s45, 1
    s_cselect_b32 s50, 4096, 0
    v_add_u32 v{VKN}, s50, v{VK}
    """)
    J = [7, 8, 6, 5, 4, 3, 2, 1, 0]
    a(f"""
    ds_read_b128 {vr(KF,4)}, v{VKN} offset:{J[0]*4096}
    ds_read_b128 {vr(KF+4,4)}, v{VKN} offset:{J[0]*4096+1024}
    s_waitcnt lgkmcnt(0)
    {mfma(S[0], KF, QF, "0")}
    {mfma(S[0], KF+4, QF+4)}
    ds_read_b128 {vr(KF,4)}, v{VK} offset:{J[1]*4096}
    ds_read_b128 {vr(KF+4,4)}, v{VK} offset:{J[1]*4096+1024}
    ds_read_b128 {vr(VA,4)}, v{VKN} offset:{J[0]*4096+2048}
    s_nop 12
    s_cmp_lg_u32 s45, 1
    s_cbranch_scc1 L_a_nofix0
    """)
    for r in range(16): a(f"v_cndmask_b32 v{S[0]+r}, v{S[0]+r}, v{T2}, {sr(64+2*r,2)}")
    a("L_a_nofix0:")
    rowmax_negm(S[0], NM)
    for r in range(16): a(f"v_add_f32 v{S[0]+r}, v{NM}, v{S[0]+r}")
    inval_sites = []
    for i in range(9):
        def rda(reg, t, sub):
            t = min(t, 8)
            return f"ds_read_b128 {vr(reg,4)}, v{VKN if t == 0 else VK} offset:{J[t]*4096+sub*1024}"
        def pre(i=i):
            if i + 1 <= 8:
                a(f"s_cmp_eq_u32 s45, {i+1}\ns_cbranch_scc1 L_a_inv{i}\nL_a_val{i}:")
                inval_sites.append(i)
            if i == 0:
                for r in range(16): a(f"v_cndmask_b32 v{MK+r}, v{NM+r}, v{T2}, {sr(64+2*r,2)}")
                a("s_nop 0")
            if i == 7:
                for r in range(16): a(f"v_cndmask_b32 v{MK+r}, v{T2}, v{NM+r}, {sr(64+2*r,2)}")
                a("s_nop 0")
        tile_iter(i, QF, rda(VB, i, 3), [rda(KF, i + 2, 0), rda(KF + 4, i + 2, 1)], rda(VA, i + 1, 2), first=(i == 0),
                  cblk=(MK if i in (0, 7) else NM), pre_qk=pre, do_qk=(i < 8), chk=(f"a{i}" if i in (2, 5) else None))
    a(f"""
    s_waitcnt lgkmcnt(0)
    s_nop 1
    {sm32(O, VB, S[0] + 8)}
    {sm16(L, AS, S[0] + 8)}
    s_nop 12
    """)
    normalise_store(O, L, OO[0], "s41", "a", f"""
    s_min_u32 s55, s45, 9
    s_sub_u32 s54, s55, 1
    s_lshl_b32 s54, s54, 12
    s_sub_u32 s54, s42, s54
    s_cmp_eq_u32 s55, 9
    s_cselect_b32 s57, 1, 2""")
    for r in range(8): a(f"v_mov_b32 v{QF+r}, v{QQ[1]+r}")
    a(f"""
    s_add_u32 s39, s39, 4096
    s_add_u32 s42, s42, 4096
    s_add_u32 s41, s41, {32*2048}
    s_add_u32 s58, s58, 1
    s_add_u32 s43, s43, 1
    s_cmp_lt_u32 s43, 2
    s_cbranch_scc1 L_ya_unit
    """)
    if STAMP: a("s_waitcnt vmcnt(0)")
    st(7)
    st.flush(T0)
    a("s_endpgm")

    a("L_x:")
    if OPT["icp"]:
        a("""
        s_getpc_b64 s[4:5]
        L_pc0:
        s_sub_u32 s4, s4, L_pc0-fused_kernel
        s_subb_u32 s5, s5, 0
        s_mov_b32 s6, L_code_end-fused_kernel
        s_mov_b32 s7, 0x00020000
        s_and_b32 s44, s31, 1
        s_lshl_b32 s44, s44, 2
        s_add_u32 s44, s44, s16
        s_lshl_b32 s44, s44, 13
        """)
        a(f"v_lshlrev_b32 v{DT}, 7, v0\nbuffer_load_dword v{DT}, v{DT}, s[4:7], s44 offen")
    a(f"""
    v_lshlrev_b32 v{VFL}, 2, v0
    v_add_u32 v{VFL}, {FLAGS}, v{VFL}
    v_mov_b32 v2, 0
    ds_write_b32 v{VFL}, v2
    ds_write_b32 v{VFL}, v2 offset:256
    ds_write_b32 v{VFL}, v2 offset:512
    s_and_b32 s50, s59, 1
    s_lshl_b32 s50, s50, 8
    v_add_u32 v{VFL}, s50, v{VFL}
    s_waitcnt lgkmcnt(0)
    """)
    srd(a, 12, "s28", "s29", WS_SIZE)
    st(0)
    a(f"""
    s_or_b32 s50, s2, s16
    s_cmp_lg_u32 s50, 0
    s_cbranch_scc1 L_x_noent
    v_mov_b32 v8, {WS_GEN}
    s_mov_b64 exec, 1
    buffer_load_dwordx2 v[12:13], v8, s[12:15], 0 offen sc1
    v_mov_b32 v14, 1
    v_mov_b32 v15, 1
    v_mov_b32 v9, 0
    s_waitcnt vmcnt(0)
    v_add_u32 v12, 1, v12
    buffer_store_dwordx2 v[12:13], v8, s[12:15], 0 offen sc1
    s_waitcnt vmcnt(0)
    global_store_dwordx4 v9, v[12:15], s[18:19] sc1
    s_mov_b64 exec, -1
    L_x_noent:
    s_and_b32 s35, s33, 7
    s_lshl_b32 s35, s35, 1
    s_lshr_b32 s50, s33, 3
    s_or_b32 s35, s35, s50
    """)
    gemm_setup(0, 1, "s35")
    a(f"""
    s_mov_b32 s31, {G2_SLOT}
    s_mov_b32 s45, 0
    s_barrier
    """)
    st(1)
    first_frags()
    def xmisc(endcmp=None):
        M = {25 + i: ops for i, ops in enumerate(ROT)}
        M[31] = ["s_waitcnt lgkmcnt(0)"]; M[BAR] = ["s_barrier"]
        if endcmp: M[30] = [endcmp]
        return M
    a(".p2align 6\nL_x_loopB:")
    stage(xmisc()); stage(xmisc("s_cmp_lt_u32 s17, 16"))
    a("s_cbranch_scc1 L_x_loopB")
    st(2)
    a(f"s_setprio {OPT['xprio']}")
    a(f"""
    s_mul_i32 s43, s37, 19456
    s_add_u32 s43, s43, {XSCR}
    s_lshl_b32 s39, s36, 12
    s_add_u32 s40, s43, s39
    s_add_u32 s41, s40, 8192
    s_xor_b32 s39, s39, 4096
    s_add_u32 s39, s43, s39
    """)
    relayout("s40", "s41", 0, QQ[0], 2)
    for op in arrive(2): a(op)
    a(f"v_add_u32 v16, s39, v{VLANE}")
    get_nonce()
    flag_base(1, "s35")
    attn_consts(False)
    for r in range(64): a(f"v_mov_b32 v{OO[0]+r}, 0")
    a(f"""
    s_lshl_b32 s50, s35, 14
    s_sub_u32 s38, s65, s50
    s_lshl_b32 s56, 1, s35
    s_lshl_b32 s42, s33, 2
    s_lshl_b32 s50, s36, 1
    s_add_u32 s42, s42, s50
    s_lshl_b32 s42, s42, 5
    s_lshl_b32 s50, s34, 1
    s_add_u32 s42, s42, s50
    s_add_u32 s42, s42, s37
    s_lshl_b32 s42, s42, 11
    s_add_u32 s42, s42, {WS_O + 4*MB}    ; O offset
    """)
    spin_lds("x1")
    for k in range(4): a(f"ds_read_b128 {vr(QQ[2]+4*k,4)}, v16 offset:{k*1024}")
    st(3)
    def FR(f): return F0 + 4 * (f % NR)
    for pz in range(2):
        if pz == 1:
            a("s_waitcnt lgkmcnt(0)")
            for op in arrive(2): a(op)
            for r in list(range(12, 16)) + list(range(248, 256)): a(f"v_mov_b32 v{r}, 0")
        for z in range(2):
            j = (3, 2, 1, 0)[2 * pz + z] if False else (1, 0, 3, 2)[2 * pz + z]
            sj = S[j & 1]
            a(mfma(sj, FR(0), QQ[j], "0")); a(mfma(sj, FR(1), QQ[j] + 4))
        a("s_nop 10")
        for z in range(2):
            j = (1, 0, 3, 2)[2 * pz + z]
            rowmax_negm(S[j & 1], NN[j])
    VQ = []
    def vtile(i, j, loads=True, first=False, do_qk=True, chk=None, side=None):
        side = side or {}
        v = 4 * i + j
        s, sp = S[v & 1], S[(v + 1) & 1]
        jb, ib = (j - 1) & 3, (i if j else i - 1)
        jn, in_ = (j + 1) & 3, (i if j < 3 else i + 1)
        e = [f"v_exp_f32 v{s+r}, v{s+r}" for r in range(16)]
        def needf(f):
            fm = f % PER
            if fm in VQ:
                k = VQ.index(fm)
                a(f"s_waitcnt vmcnt({len(VQ) - 1 - k})"); del VQ[:k + 1]
                return True
            return False
        def freef(f):
            if not loads: return False
            g = f + NR
            a(f"buffer_load_dwordx4 {vr(FR(f),4)}, v{VLANE}, s[12:15], s60 offen offset:{(g & 3)*1024} {HL}")
            VQ.append(g % PER)
            return True
        def sd(k, did=True):
            for op in side.get(k, []): a(op); did = True
            if not did: a("s_nop 0")
        a(e[0]); a(e[1])
        if not first: a(sm32(OO[jb], FR(4 * ib + 3), sp + 8))
        sd(0)
        if j == 0 and not first: freef(4 * ib + 3)
        a(e[2]); a(e[3]); a(e[4])
        if not first: a(sm16(LL[jb], AS, sp + 8))
        needf(4 * in_); sd(1)
        a(e[5])
        if do_qk: a(mfma(sp, FR(4 * in_), QQ[jn], NN[jn]))
        needf(4 * in_ + 1); sd(2)
        if j == 2: freef(4 * i)
        a(e[6]); a(e[7]); a(e[8])
        if do_qk: a(mfma(sp, FR(4 * in_ + 1), QQ[jn] + 4))
        d = needf(4 * i + 2)
        if j == 2: d = freef(4 * i + 1) or d
        sd(3, d)
        a(e[9]); a(e[10]); a(e[11])
        a(sm32(OO[j], FR(4 * i + 2), s))
        d = freef(4 * i + 2) if j == 3 else False
        sd(4, d)
        a(e[12]); a(e[13])
        if chk: a(f"v_max3_f32 v{T0}, v{LL[0]}, v{LL[1]}, v{LL[2]}\nv_max_f32 v{T0}, v{T0}, v{LL[3]}\nv_cmp_lt_f32 vcc, s46, v{T0}")
        a(e[14])
        a(sm16(LL[j], AS, s))
        d = needf(4 * i + 3)
        if chk:
            a(f"s_cbranch_vccnz L_resc_{chk}\nL_back_{chk}:"); xres.append(chk); d = True
        sd(5, d)
        a(e[15])
    xres = []
    TPB = NR // 4 if NR % 4 == 0 else NR // 2
    TPB = max(TPB, 2)
    PER = 4 * TPB * 1000
    def start_pipe():
        a(mfma(S[0], FR(0), QQ[0], NN[0])); a(mfma(S[0], FR(1), QQ[0] + 4))
    def drain_pipe(i):
        a(f"s_nop 1\n{sm32(OO[3], FR(4 * i + 3), S[1] + 8)}\n{sm16(LL[3], AS, S[1] + 8)}")
    a("s_nop 1"); start_pipe(); a("s_nop 12")
    for j in range(4): vtile(0, j, loads=False, first=(j == 0))
    a("s_waitcnt vmcnt(0)")
    publish()
    a("s_setprio 0")
    st(4)
    for j in range(4): vtile(1, j, loads=False, do_qk=(j < 3), chk=None)
    drain_pipe(1)
    def tile_ptr(tag):
        return [["s_lshr_b32 s50, s44, 1"], ["s_add_u32 s50, s50, s35"], ["s_and_b32 s50, s50, 15"],
                ["s_bitcmp1_b32 s56, s50"], [f"s_cbranch_scc0 L_xw_{tag}", f"L_xwd_{tag}:"], ["s_lshl_b32 s50, s50, 14"],
                ["s_add_u32 s61, s38, s50"], ["s_and_b32 s50, s44, 1"], ["s_lshl_b32 s50, s50, 12"],
                ["s_add_u32 s44, s44, 1"], ["s_add_u32 s60, s61, s50"]]
    def wait_site(tag):
        def o():
            a(f"L_xw_{tag}:\ns_lshl_b32 s51, 1, s50")
            poll("x" + tag, "s51", OPT["xsleep"])
            a(f"s_branch L_xwd_{tag}")
        ool.append(o)
    a("s_mov_b32 s44, 2\ns_mov_b32 s45, 0")
    for f in range(NR - 1):
        if f % 4 == 0:
            for ops in tile_ptr(f"p{f}"):
                for op in ops: a(op)
            wait_site(f"p{f}")
        a(f"buffer_load_dwordx4 {vr(FR(f),4)}, v{VLANE}, s[12:15], s60 offen offset:{(f & 3)*1024} {HL}")
    for r in range(4): a(f"v_mov_b32 v{FR(NR-1)+r}, 0")
    for r in range(8): a(f"v_mov_b32 v{S[1]+8+r}, 0")
    a(f"s_waitcnt vmcnt({NR-3})")
    start_pipe()
    st(5)
    a("s_nop 12")
    PER = 4 * TPB
    assert PER % NR == 0 and 30 % TPB == 0
    PER = 2 * PER
    def body(base):
        for t in range(TPB):
            i = base + t
            sides = {j: {} for j in range(4)}
            frees = [(0, 0, 4 * (i - 1) + 3), (2, 2, 4 * i), (2, 3, 4 * i + 1), (3, 4, 4 * i + 2)]
            nxt = [(jj, k, f) for (jj, k, f) in frees if (f + NR) % 4 == 0][0]
            ops = tile_ptr(f"b{t}")
            if NR == 8: slots = [(0, 1), (0, 2), (0, 4), (1, 0), (1, 1), (1, 2), (1, 3), (1, 4), (1, 5), (2, 0), (2, 1)]
            else: slots = [(0, 1), (0, 2), (0, 4), (1, 0), (1, 1), (1, 2), (1, 3), (1, 4), (1, 5), (2, 0), (2, 5)]
            assert nxt[:2] == ((2, 2) if NR == 8 else (3, 4))
            if base == 0: wait_site(f"b{t}")
            for (jj, k), op in zip(slots, ops): sides[jj][k] = op
            if t == TPB - 1:
                sides[3][0] = ["s_add_u32 s45, s45, 1"]; sides[3][3] = [f"s_cmp_lt_u32 s45, {30 // TPB}"]
            for j in range(4): vtile(i, j, chk=(f"x{t}" if (j == 3 and t % 2 == 1) else None), side=sides[j])
    VQ[:] = list(range(2, NR - 1))
    a(".p2align 6\nL_x_loop:")
    body(0)
    assert VQ == [(f + PER // 2) % PER for f in range(2, NR - 1)], VQ
    a("s_cbranch_scc1 L_x_loop")
    st(6)
    drain_pipe(TPB - 1)
    VFL, VONE = 30, 31
    a(f"""
    s_lshl_b32 s50, s37, 8
    s_add_u32 s50, s50, {FLAGS}
    v_lshrrev_b32 v{VFL}, 2, v{VLANE}
    v_add_u32 v{VFL}, s50, v{VFL}
    v_mov_b32 v{VONE}, 1
    """)
    spin_lds("x1b")
    a(f"""
    s_mul_i32 s40, s36, 9216
    s_xor_b32 s41, s40, 9216
    s_add_u32 s40, s40, s43
    s_add_u32 s41, s41, s43
    v_add_u32 v16, s40, v{VLANE}
    v_add_u32 v17, s41, v{VLANE}
    v_mov_b32 v20, v{LL[2]}
    v_mov_b32 v21, v{NN[2]}
    v_mov_b32 v23, v{NN[3]}
    """)
    for k in range(4): a(f"ds_write_b128 v16, {vr(OO[2]+4*k,4)} offset:{k*1024}")
    a(f"s_nop 1\nv_mov_b32 v22, v{LL[3]}")
    for k in range(4): a(f"ds_write_b128 v16, {vr(OO[3]+4*k,4)} offset:{4096+k*1024}")
    a("ds_write_b128 v16, v[20:23] offset:8192")
    group_sync("x2", 2)
    a("ds_read_b128 v[20:23], v17 offset:8192")
    for k in range(8): a(f"ds_read_b128 {vr(NN[1]+16+4*k-16 if False else (OO[2]+4*k),4)}, v17 offset:{k*1024}")
    a("s_waitcnt lgkmcnt(8)")
    for j in range(2):
        l2, n2, g1, g2 = 20 + 2 * j, 21 + 2 * j, 24 + 2 * j, 25 + 2 * j
        a(f"""
        v_frexp_exp_i32_f32 v28, v{LL[j]}
        v_frexp_exp_i32_f32 v29, v{l2}
        v_cvt_f32_i32 v28, v28
        v_cvt_f32_i32 v29, v29
        v_sub_f32 v28, v28, v{NN[j]}
        v_sub_f32 v29, v29, v{n2}
        v_max_f32 v28, v28, v29
        v_add_f32 v{g1}, v{NN[j]}, v28
        v_add_f32 v{g2}, v{n2}, v28
        v_exp_f32 v{g1}, -v{g1}
        v_exp_f32 v{g2}, -v{g2}
        s_nop 0
        v_mul_f32 v{LL[j]}, v{g1}, v{LL[j]}
        v_fma_f32 v{LL[j]}, v{g2}, v{l2}, v{LL[j]}
        """)
        for r in range(16): a(f"v_mul_f32 v{OO[j]+r}, v{g1}, v{OO[j]+r}")
    a("s_waitcnt lgkmcnt(0)")
    for j in range(2):
        for r in range(16): a(f"v_fma_f32 v{OO[j]+r}, v{25+2*j}, v{OO[2+j]+r}, v{OO[j]+r}")
    a("s_lshl_b32 s50, s36, 13\ns_sub_u32 s38, s38, s50")
    for j in range(2):
        args = "s_mov_b32 s54, s38\ns_mov_b32 s55, 64\ns_mov_b32 s57, 0\n" + "\n".join(f"v_mov_b32 v{QF+r}, v{QQ[j]+r}" for r in range(8))
        normalise_store(OO[j], LL[j], NN[2] + 8 * j, "s42", f"b{j}", args)
        if j == 0: a(f"s_add_u32 s42, s42, {32*2048}")
    if STAMP: a("s_waitcnt vmcnt(0)")
    st(7)
    st.flush(T0)
    a("L_f_end:\ns_endpgm")
    VFL, VONE = 254, 255
    for o in ool: o()
    for i in inval_sites:
        a(f"L_a_inv{i}:\ns_nop 7")
        for r in range(16): a(f"v_mov_b32 v{NM+r}, v{T2}")
        a(f"s_nop 1\ns_branch L_a_val{i}")
    def rescale(o, l, nm):
        a(f"""
        v_frexp_exp_i32_f32 v{T0}, v{l}
        v_add_u32 v{T0}, {int(R_OFF)}, v{T0}     ; delta
        v_cvt_f32_i32 v{T1}, v{T0}
        v_sub_u32 v{T0}, 0, v{T0}
        """)
        for r in range(16): a(f"v_ldexp_f32 v{o+r}, v{o+r}, v{T0}")
        a(f"v_ldexp_f32 v{l}, v{l}, v{T0}")
        for r in range(16): a(f"v_sub_f32 v{nm+r}, v{nm+r}, v{T1}")
    def scale_p(s):
        for r in range(8, 15): a(f"v_ldexp_f32 v{s+r}, v{s+r}, v{T0}")
        a(f"v_sub_f32 v{s+15}, v{s+15}, v{T1}")
    def shift_s(s):
        for r in range(16): a(f"v_sub_f32 v{s+r}, v{s+r}, v{T1}")
    for par, tag in rescue_sites:
        a(f"L_resc_{tag}:\ns_nop 15")
        rescale(O, L, NM); scale_p(S[par]); shift_s(S[par ^ 1])
        a(f"s_nop 1\ns_branch L_back_{tag}")
    for tag in xres:
        a(f"L_resc_{tag}:\ns_call_b64 s[52:53], L_rescx\ns_branch L_back_{tag}")
    a("L_rescx:\ns_nop 15")
    for j in range(4):
        rescale(OO[j], LL[j], NN[j])
        if j == 0: shift_s(S[0])
        if j == 3: scale_p(S[1])
    a("s_nop 1\ns_setpc_b64 s[52:53]")
    s = S[0]; M = S[1]; AL = S[1] + 1
    a(f"L_slow:\ns_waitcnt vmcnt(0)\ns_nop 15\nv_mov_b32 v{M}, 0xff7fffff\ns_mov_b32 s50, 0")
    zero_acc()
    a("L_slow_loop:")
    for k in range(4): a(f"buffer_load_dwordx4 {vr(F0+4*k,4)}, v{VLANE}, s[12:15], s54 offen offset:{k*1024} {HL}")
    a(f"""
    s_waitcnt vmcnt(0)
    {mfma(s, KF, QF, "0")}
    {mfma(s, KF+4, QF+4)}
    s_nop 15
    s_cmp_eq_u32 s57, 1
    s_cbranch_scc0 L_slow_nm1
    s_cmp_eq_u32 s50, 0
    s_cbranch_scc0 L_slow_nm1
    """)
    for r in range(16): a(f"v_cndmask_b32 v{s+r}, v{T2}, v{s+r}, {sr(64+2*r,2)}")
    a(f"""
    L_slow_nm1:
    s_add_u32 s50, s50, 1
    s_cmp_eq_u32 s57, 0
    s_cbranch_scc1 L_slow_nm2
    s_cmp_eq_u32 s50, s55
    s_cbranch_scc0 L_slow_nm2
    """)
    for r in range(16): a(f"v_cndmask_b32 v{s+r}, v{s+r}, v{T2}, {sr(64+2*r,2)}")
    a("L_slow_nm2:")
    a(f"v_max3_f32 v{T0}, v{s}, v{s+1}, v{M}")
    for r in range(2, 16, 2): a(f"v_max3_f32 v{T0}, v{T0}, v{s+r}, v{s+r+1}")
    a(f"""
    v_mov_b32 v{T1}, v{T0}
    s_nop 1
    v_permlane32_swap_b32 v{T0}, v{T1}
    s_nop 1
    v_max_f32 v{T0}, v{T0}, v{T1}
    v_sub_f32 v{AL}, v{M}, v{T0}
    v_exp_f32 v{AL}, v{AL}
    v_mov_b32 v{M}, v{T0}
    """)
    for r in range(16): a(f"v_sub_f32 v{s+r}, v{s+r}, v{M}")
    for r in range(16): a(f"v_exp_f32 v{s+r}, v{s+r}")
    for r in range(16): a(f"v_mul_f32 v{O+r}, v{AL}, v{O+r}")
    a(f"""
    v_mul_f32 v{L}, v{AL}, v{L}
    s_nop 3
    {sm32(O, VA, s)}
    {sm32(O, VB, s+8)}
    {sm16(L, AS, s)}
    {sm16(L, AS, s+8)}
    s_nop 15
    s_add_u32 s54, s54, 4096
    s_cmp_lt_u32 s50, s55
    s_cbranch_scc1 L_slow_loop
    s_setpc_b64 s[52:53]
    """)
    return kdesc(K, 256)

PJ_NB = 4
PJ_LDS = PJ_NB * 32768

def gen_proj(a):
    K = "proj_kernel"
    kstart(a, K)
    a("""
    s_cmp_ge_u32 s2, 256
    s_cbranch_scc1 L_p_end
    s_load_dwordx2 s[20:21], s[0:1], 16
    s_load_dwordx2 s[22:23], s[0:1], 40
    s_load_dwordx2 s[24:25], s[0:1], 48
    s_load_dwordx2 s[28:29], s[0:1], 64
    v_lshrrev_b32 v1, 6, v0
    v_and_b32 v0, 63, v0
    s_and_b32 s30, s2, 7
    s_lshr_b32 s31, s2, 3
    v_readfirstlane_b32 s16, v1
    s_lshr_b32 s32, s30, 2        ; part
    s_and_b32 s33, s30, 3
    s_lshl_b32 s33, s33, 2
    s_and_b32 s34, s31, 3
    s_add_u32 s33, s33, s34       ; mt (0..15)
    s_lshr_b32 s34, s31, 2        ; nt (0..7)
    s_waitcnt lgkmcnt(0)
    s_cmp_eq_u32 s32, 0
    s_cselect_b32 s20, s20, s22
    s_cselect_b32 s21, s21, s23
    """)
    srd(a, 4, "s20", "s21", 1024 * 1024 * 2)
    srd(a, 8, "s24", "s25", 2048 * 2048 * 2)
    srd(a, 12, "s28", "s29", WS_SIZE)
    a("""
    s_cmp_ge_u32 s16, 4
    s_cbranch_scc1 L_p_loader
    """)
    a("""
    s_lshr_b32 s36, s16, 1
    s_and_b32 s37, s16, 1
    v_lshlrev_b32 v1, 4, v0
    s_lshl_b32 s38, s36, 13
    v_add_u32 v1, s38, v1
    v_lshrrev_b32 v7, 5, v0       ; h
    v_bfe_u32 v6, v0, 2, 2        ; r = i>>2
    v_lshl_add_u32 v5, v7, 2, v6  ; row = 4h + r
    v_lshlrev_b32 v5, 8, v5       ; *256
    v_and_b32 v4, 1, v0           ; h' = c&1
    v_lshlrev_b32 v4, 2, v4       ; 4h'
    v_bfe_u32 v7, v0, 4, 1        ; G  (g>>1)
    v_or_b32 v4, v4, v7
    s_lshl_b32 s38, s37, 3
    v_or_b32 v4, s38, v4          ; u for b=0
    v_and_b32 v7, 1, v6
    v_lshlrev_b32 v7, 1, v7
    v_xor_b32 v4, v4, v7
    v_lshrrev_b32 v7, 1, v6
    v_lshlrev_b32 v7, 3, v7
    v_xor_b32 v4, v4, v7
    v_bfe_u32 v7, v0, 1, 1        ; g&1
    v_lshl_add_u32 v5, v7, 3, v5
    v_add_u32 v5, 16384, v5
    v_lshl_add_u32 v2, v4, 4, v5
    v_xor_b32 v4, 2, v4
    v_lshl_add_u32 v3, v4, 4, v5
    """)
    ACC = 72
    st = Stamper(a, 6, 1)
    st(0)
    for r in range(ACC, ACC + 64): a(f"v_mov_b32 v{r}, 0")
    F = [8, 40]
    def reads(fs, u):
        r = []
        for kk in range(2):
            ks = 2 * u + kk
            b = F[fs] + 16 * kk
            r.append(f"ds_read_b128 {vr(b,4)}, v1 offset:{ks*1024}")
            r.append(f"ds_read_b64_tr_b16 {vr(b+8,2)}, v2 offset:{ks*4096}")
            r.append(f"ds_read_b64_tr_b16 {vr(b+10,2)}, v2 offset:{ks*4096+2048}")
            r.append(f"ds_read_b64_tr_b16 {vr(b+12,2)}, v3 offset:{ks*4096}")
            r.append(f"ds_read_b64_tr_b16 {vr(b+14,2)}, v3 offset:{ks*4096+2048}")
            r.append(f"ds_read_b128 {vr(b+4,4)}, v1 offset:{4096+ks*1024}")
        return r
    def mfmas(fs):
        m = []
        for kk in range(2):
            b = F[fs] + 16 * kk
            for tt in range(2):
                for bb in range(2):
                    m.append(mfma(ACC + (tt * 2 + bb) * 16, b + 8 + 4 * bb, b + 4 * tt))
        return m
    a("s_mov_b32 s40, 0\ns_mov_b32 s49, 0x8000\ns_barrier")
    st(1)
    for r in reads(0, 0): a(r)
    a(".p2align 6\nL_p_loop:")
    for u in range(2):
        rd = reads(u ^ 1, u ^ 1); mm = mfmas(u)
        a("s_waitcnt lgkmcnt(0)")
        if u == 1:
            a("s_barrier")
            a(mm[0])
            a(f"""
            s_add_u32 s40, s40, 1
            s_and_b32 s41, s40, {PJ_NB-1}
            s_cmp_eq_u32 s41, 0
            s_cselect_b32 s43, {(-(PJ_NB-1)*32768) & 0xffffffff:#x}, s49
            v_add_u32 v1, s43, v1
            v_add_u32 v2, s43, v2
            v_add_u32 v3, s43, v3
            """)
        else:
            a(mm[0])
        a(rd[0]); a(rd[1]); a(rd[2])
        for i in range(1, 8):
            a(mm[i])
            if i < 4:
                a(rd[3 * i]); a(rd[3 * i + 1]); a(rd[3 * i + 2])
    a("s_cmp_lt_u32 s40, 16\ns_cbranch_scc1 L_p_loop")
    st(2)
    SC = OPT["p_sc"]
    a("""
    s_waitcnt lgkmcnt(0)
    s_lshl_b32 s46, s16, 13
    v_and_b32 v1, 31, v0          ; t
    v_lshrrev_b32 v2, 5, v0       ; h'
    v_lshlrev_b32 v2, 2, v2
    v_and_b32 v3, 7, v0
    v_xor_b32 v2, v2, v3          ; (4h') ^ (t&7)
    v_lshlrev_b32 v1, 7, v1
    v_add_u32 v1, s46, v1
    v_lshl_add_u32 v8, v2, 4, v1
    v_xor_b32 v9, 16, v8
    v_xor_b32 v10, 32, v8
    v_xor_b32 v11, 48, v8
    v_lshlrev_b32 v12, 4, v0
    v_add_u32 v12, s46, v12
    s_lshl_b32 s44, s33, 7
    s_lshl_b32 s45, s36, 6
    s_add_u32 s44, s44, s45
    v_lshrrev_b32 v1, 3, v0
    v_xor_b32 v2, v1, v3          ; unit
    v_add_u32 v1, s44, v1
    v_lshlrev_b32 v1, 12, v1
    v_lshl_add_u32 v1, v2, 4, v1
    s_lshl_b32 s44, s32, 11
    s_lshl_b32 s45, s34, 8
    s_add_u32 s44, s44, s45
    s_lshl_b32 s45, s37, 7
    s_add_u32 s44, s44, s45
    """)
    for tt in range(2):
        for bb in range(2):
            d = ACC + (tt * 2 + bb) * 16
            for r in range(8): a(f"v_cvt_pk_bf16_f32 v{d+r}, v{d+2*r}, v{d+2*r+1}")
            a(f"ds_write_b128 v{8+2*bb}, {vr(d,4)} offset:{tt*4096}")
            a(f"ds_write_b128 v{9+2*bb}, {vr(d+4,4)} offset:{tt*4096}")
        a("s_waitcnt lgkmcnt(0)")
        for i in range(4): a(f"ds_read_b128 {vr(16+16*tt+4*i,4)}, v12 offset:{tt*4096+i*1024}")
    for i in range(8):
        a(f"s_waitcnt lgkmcnt({max(0, 7-i) if i >= 4 else 4})")
        a(f"buffer_store_dwordx4 {vr(16+4*i,4)}, v1, s[8:11], s44 offen {SC}")
        a("s_add_u32 s44, s44, 0x8000")
    st(3)
    if STAMP: a("s_waitcnt vmcnt(0)")
    st(4)
    st.flush(1)
    a("s_endpgm")
    a("L_p_loader:")
    a(f"""
    s_sub_u32 s36, s16, 4
    s_lshl_b32 s37, s33, 2
    s_add_u32 s37, s37, s36
    s_lshl_b32 s37, s37, 16
    s_lshl_b32 s38, s32, 22
    s_add_u32 s37, s37, s38
    s_add_u32 s37, s37, {WS_O}
    v_lshlrev_b32 v1, 4, v0
    v_add_u32 v1, s37, v1         ; O voffset
    v_lshrrev_b32 v2, 4, v0       ; r
    v_and_b32 v3, 15, v0          ; p
    v_and_b32 v4, 1, v2
    v_lshlrev_b32 v4, 1, v4
    v_xor_b32 v3, v3, v4
    v_lshrrev_b32 v4, 1, v2
    v_lshlrev_b32 v4, 3, v4
    v_xor_b32 v3, v3, v4          ; u
    s_lshl_b32 s38, s36, 4
    v_add_u32 v2, s38, v2
    v_lshlrev_b32 v2, 11, v2      ; row*2048
    v_lshl_add_u32 v2, v3, 4, v2
    s_lshl_b32 s38, s34, 8
    v_add_u32 v2, s38, v2
    s_lshl_b32 s40, s36, 12       ; lw*4096
    """)
    for j in range(4): a(f"v_add_u32 v{8+j}, {j*4*2048 - j*1024}, v2")
    def ld(s):
        base = (s % PJ_NB) * 32768
        a(f"s_mov_b32 s42, {s*4096}\ns_mov_b32 s43, {s*64*2048}")
        a(f"s_add_u32 m0, s40, {base}\ns_nop 0")
        for j in range(4): a(f"buffer_load_dwordx4 v1, s[12:15], s42 offen offset:{j*1024} lds")
        a(f"s_add_u32 m0, s40, {base+16384}\ns_nop 0")
        for j in range(4): a(f"buffer_load_dwordx4 v{8+j}, s[4:7], s43 offen offset:{j*1024} lds")
    for s in range(OPT["p_pro"]): ld(s)
    issued = OPT["p_pro"]
    for s in range(16):
        a(f"s_waitcnt vmcnt({(issued - 1 - s) * 8})\ns_barrier")
        if issued < 16 and issued <= s + PJ_NB - 1:
            ld(issued); issued += 1
    a("L_p_end:\ns_endpgm")
    return kdesc(K, 136)

def main():
    global STAMP
    if "--stamp" in sys.argv:
        STAMP = True; sys.argv.remove("--stamp")
    for arg in list(sys.argv[1:]):
        if "=" in arg:
            k, v = arg.split("=", 1); OPT[k] = type(OPT[k])(v.replace("+", " ")); sys.argv.remove(arg)
    a = Asm()
    hdr = open("cdna_kernels/%s.s.ref" % NAME).read().split("\n")
    head = [l for l in hdr if l.startswith(";") and "@launch" not in l and "Override" not in l and "grid=ceil" not in l]
    txt = "\n".join(head) + "\n"
    txt += f"; @launch kernel=fused_kernel grid=(256,1,1) block=(512,1,1) lds={G2_LDS}\n"
    txt += f"; @launch kernel=proj_kernel grid=(256,1,1) block=(512,1,1) lds={PJ_LDS}\n"
    txt += '.amdgcn_target "amdgcn-amd-amdhsa--gfx950"\n.text\n'
    d = [gen_fused(a), gen_proj(a)]
    a("L_code_end:")
    txt += a.text()
    txt += '.section .rodata,"a"\n' + "".join(d)
    out = sys.argv[1] if len(sys.argv) > 1 else OUT
    open(out, "w").write(txt)
    print("wrote", out, len(txt))

if __name__ == "__main__":
    main()
```

```python
import sys, math, struct

NAME = "concat_heads__sliding_block__mha_block__prompt"
OUT = "cdna_kernels/%s.s" % NAME

def f32(x): return struct.unpack("<I", struct.pack("<f", x))[0]

class Asm:
    def __init__(self): self.l = []
    def __call__(self, s):
        for line in s.strip("\n").split("\n"):
            line = line.strip()
            if not line: continue
            self.l.append(line if line.endswith(":") or line.startswith(".") else "    " + line)
    def text(self): return "\n".join(self.l) + "\n"

def vr(a, n): return "v[%d:%d]" % (a, a + n - 1)
def sr(a, n): return "s[%d:%d]" % (a, a + n - 1)

MB = 1 << 20
OPT = dict(q_sc="sc1", a_sc="sc1", p_sc="sc1", ws_off=0, q_lead=3, q_touch=0, p_pro=2, icp=1, h_ld="sc1", yprio=2, thr=9, xsleep=4, ysleep=32, nring=10, ykill=0, xdyn=0, wot=1, ydelay=20, xprio=3, pret=1, epub=1, roff=64, thi=48, fuse=1, pprio=2, pdelay=24, psleep=8, pdepth=3, wthr=6)
WS_Q, WS_KV, WS_O, WS_SIZE = 0, 8 * MB, 24 * MB, 34 * MB
WS_GEN = 1 * MB
WS_FL = 0

def srd(a, s, lo, hi, size):
    if lo == "s28" and OPT["ws_off"]:
        a(f"s_add_u32 s28, s28, {OPT['ws_off']*MB:#x}\ns_addc_u32 s29, s29, 0")
    a(f"""
    s_mov_b32 s{s}, {lo}
    s_mov_b32 s{s+1}, {hi}
    s_mov_b32 s{s+2}, {size:#x}
    s_mov_b32 s{s+3}, 0x00020000
    """)

def kstart(a, name):
    a(f"""
    .globl {name}
    .p2align 8
    .type {name},@function
    {name}:
    """)

def kdesc(name, nfv, nsgpr=102):
    acc = (nfv + 3) // 4 * 4
    return f"""
.p2align 6
.amdhsa_kernel {name}
  .amdhsa_next_free_vgpr {nfv}
  .amdhsa_next_free_sgpr {nsgpr}
  .amdhsa_accum_offset {acc}
  .amdhsa_group_segment_fixed_size 0
  .amdhsa_kernarg_size 72
  .amdhsa_user_sgpr_count 2
  .amdhsa_user_sgpr_kernarg_segment_ptr 1
  .amdhsa_system_sgpr_workgroup_id_x 1
.end_amdhsa_kernel
"""

STAMP = False
class Stamper:
    def __init__(self, a, vreg, kidx): self.a, self.v, self.k = a, vreg, kidx
    def __call__(self, n):
        if not STAMP: return
        self.a(f"""
        s_memtime s[96:97]
        s_memrealtime s[98:99]
        s_waitcnt lgkmcnt(0)
        v_writelane_b32 v{self.v}, s96, {n}
        v_writelane_b32 v{self.v}, s98, {32+n}
        """)
    def dyn(self, sidx, mul, add):
        if not STAMP: return
        self.a(f"""
        s_memtime s[96:97]
        s_mul_i32 s98, {sidx}, {mul}
        s_add_u32 m0, s98, {add}
        s_waitcnt lgkmcnt(0)
        v_writelane_b32 v{self.v}, s96, m0
        """)
    def flush(self, tmp, lane="v0"):
        if not STAMP: return
        self.a(f"""
        s_lshl_b32 s96, s2, 3
        s_add_u32 s96, s96, s16
        s_lshl_b32 s96, s96, 8
        s_add_u32 s96, s96, {WS_SIZE - 2*MB + self.k * 512 * 1024}
        v_lshlrev_b32 v{tmp}, 2, {lane}
        buffer_store_dword v{self.v}, v{tmp}, s[12:15], s96 offen
        """)

def mfma(d, A, B, C=None):
    c = vr(d, 16) if C is None else (C if isinstance(C, str) else vr(C, 16))
    return f"v_mfma_f32_32x32x16_bf16 {vr(d,16)}, {vr(A,4)}, {vr(B,4)}, {c}"

G2_SLOT = 40960
G2_LDS = 163840
FLAGS = 159 * 1024
XSCR = 120 * 1024
R_OFF = 64.0
T_HI = 2.0 ** 48
SPIN_MAX = 1 << 18

def mfma16(d, A, B):
    return f"v_mfma_f32_16x16x32_bf16 {vr(d,4)}, {vr(A,4)}, {vr(B,4)}, {vr(d,4)}"

def upper_mask(r):
    m = 0
    for l in range(64):
        if r + 16 * (l >> 5) > (l & 31): m |= 1 << l
    return m

def gen_fused(a):
    K = "fused_kernel"
    kstart(a, K)
    NR = OPT["nring"]
    R_OFF = float(OPT["roff"]); T_HI = 2.0 ** OPT["thi"]
    VLANE, T0, T1, IDX, T2, VCNT = 1, 2, 3, 4, 5, 6
    AS = 8; S = [16, 32]
    OO = [48, 64, 80, 96]; NN = [112, 128, 144, 232]; QQ = [160, 168, 176, 184]; F0 = 192
    LL = [12, 248, 250, 252]
    VFL, VONE = 254, 255
    O, L, QF, KF, VA, VB, NM, MK = OO[2], 228, QQ[2], F0, F0 + 8, F0 + 12, NN[0], NN[1]
    VK, VKN = 208, 209
    DX, DW, DT = 232, 236, 242
    assert NR <= 10
    NINF = 0xff800000
    HL = OPT["h_ld"]; THR = OPT["thr"]; SC = OPT["q_sc"]; ASC = OPT["a_sc"]
    st = Stamper(a, 7, 0)
    a(f"""
    s_cmp_ge_u32 s2, 256
    s_cbranch_scc1 L_f_end
    s_load_dwordx4 s[20:23], s[0:1], 0
    s_load_dwordx2 s[24:25], s[0:1], 24
    s_load_dwordx2 s[26:27], s[0:1], 32
    s_load_dwordx2 s[28:29], s[0:1], 64
    s_load_dwordx2 s[18:19], s[0:1], 56
    v_lshrrev_b32 v1, 6, v0
    v_and_b32 v0, 63, v0
    s_and_b32 s30, s2, 7          ; xcd
    s_lshr_b32 s31, s2, 3         ; idx
    v_readfirstlane_b32 s16, v1
    s_and_b32 s33, s30, 1
    s_lshl_b32 s33, s33, 3
    s_and_b32 s34, s31, 7
    s_add_u32 s33, s33, s34       ; mt (0..15)
    s_lshr_b32 s34, s30, 1
    s_lshl_b32 s34, s34, 2
    s_lshr_b32 s35, s31, 3
    s_add_u32 s34, s34, s35       ; nt (0..15)
    s_and_b32 s59, s16, 3
    v_mov_b32 v{VONE}, 1
    s_cmp_lt_u32 s16, 4
    s_cbranch_scc1 L_x
    """)

    def flag_base(kind, spos):
        a(f"""
        s_lshl_b32 s49, s34, 2
        s_add_u32 s49, s49, s59
        s_lshl_b32 s49, s49, 11
        s_add_u32 s49, s49, {WS_FL + kind * 131072}
        s_lshl_b32 s32, {spos}, 7
        s_add_u32 s32, s32, s49
        """)
    def oflag_base(kind):
        a(f"""
        s_lshl_b32 s49, s33, 1
        s_add_u32 s49, s49, s36
        s_lshl_b32 s49, s49, 12
        s_add_u32 s49, s49, {WS_FL + kind * 131072}
        s_lshl_b32 s32, s34, 1
        s_add_u32 s32, s32, s37
        s_lshl_b32 s32, s32, 7
        s_add_u32 s32, s32, s49
        """)
    def get_nonce():
        a(f"""
        v_mov_b32 v{T0}, {FLAGS + 768}
        ds_read_b64 {vr(T0,2)}, v{T0}
        s_waitcnt lgkmcnt(0)
        v_readfirstlane_b32 s62, v{T0}
        v_readfirstlane_b32 s63, v{T1}
        """)
    def publish():
        a(f"""
        v_lshrrev_b32 v{VCNT}, 1, v{VLANE}
        v_mov_b32 v{T0}, s62
        v_mov_b32 v{T1}, s63
        s_mov_b64 exec, 0xffff
        buffer_store_dwordx2 {vr(T0,2)}, v{VCNT}, s[12:15], s32 offen sc1
        s_mov_b64 exec, -1
        """)
    def poll(tag, sneed, sleep, lanes=16):
        a(f"""
        s_mov_b32 s100, {SPIN_MAX}
        L_poll_{tag}:
        v_lshlrev_b32 v{T0}, 3, v{VLANE}
        {'s_mov_b64 exec, 0xffff' if lanes == 16 else 's_mov_b32 exec_hi, 0'}
        buffer_load_dwordx2 {vr(T0,2)}, v{T0}, s[12:15], s49 offen sc1
        s_waitcnt vmcnt(0)
        v_cmp_eq_u64 vcc, s[62:63], {vr(T0,2)}
        s_mov_b64 exec, -1
        s_nop 3
        s_or_b32 s56, s56, vcc_lo
        s_and_b32 s101, s56, {sneed}
        s_cmp_eq_u32 s101, {sneed}
        s_cbranch_scc1 L_polld_{tag}
        s_sleep {sleep}
        s_sub_u32 s100, s100, 1
        s_cbranch_scc0 L_poll_{tag}
        L_polld_{tag}:
        """)
    def attn_consts(masks):
        a(f"""
        s_mov_b32 s46, {f32(T_HI):#x}
        s_mov_b32 s47, {f32(R_OFF):#x}
        v_mov_b32 v{IDX}, 0xdddddddd
        v_and_b32 v{T0}, 7, v0
        v_mov_b32 v{T1}, 0x3f803f80
        v_cmp_eq_u32 vcc, 0, v{T0}
        v_mov_b32 v{T2}, {NINF:#x}
        s_nop 0
        v_cndmask_b32 v{AS}, 0, v{T1}, vcc
        v_cndmask_b32 v{AS+1}, 0, v{T1}, vcc
        v_cmp_eq_u32 vcc, 4, v{T0}
        s_nop 1
        v_cndmask_b32 v{AS+2}, 0, v{T1}, vcc
        v_cndmask_b32 v{AS+3}, 0, v{T1}, vcc
        """)
        if masks:
            for r in range(16):
                m = upper_mask(r)
                a(f"s_mov_b32 s{64+2*r}, {m & 0xffffffff:#x}\ns_mov_b32 s{65+2*r}, {m >> 32:#x}")
    def zero_acc():
        for r in range(16): a(f"v_mov_b32 v{O+r}, 0")
        for r in range(4): a(f"v_mov_b32 v{L+r}, 0")
    def arrive(n): return [f"ds_add_u32 v{VFL}, v{VONE}", f"s_add_u32 s48, s48, {n}"]
    RDCNT = f"ds_read_b32 v{VCNT}, v{VFL}"
    def spin_lds(tag, sleep=1):
        a(f"""
        s_mov_b32 s100, {SPIN_MAX * 16}
        L_spin_{tag}:
        ds_read_b32 v{VCNT}, v{VFL}
        s_waitcnt lgkmcnt(0)
        v_cmp_le_u32 vcc, s48, v{VCNT}
        s_cbranch_vccnz L_spind_{tag}
        s_sleep {sleep}
        s_sub_u32 s100, s100, 1
        s_cbranch_scc0 L_spin_{tag}
        L_spind_{tag}:
        """)
    def group_sync(tag, n, sleep=1):
        for op in arrive(n): a(op)
        spin_lds(tag, sleep)
    ool = []

    c = math.log2(math.e) / math.sqrt(32.0)
    def gemm_setup(slot0, part, spos):
        a(f"""
        s_lshr_b32 s36, s59, 1        ; wm
        s_and_b32 s37, s59, 1         ; wh
        v_and_b32 v6, 15, v0          ; t
        v_lshrrev_b32 v8, 4, v0       ; g
        v_bfe_u32 v5, v0, 1, 3        ; f = (t>>1)&7
        v_lshlrev_b32 v6, 7, v6       ; t*128
        s_lshl_b32 s38, s36, 13
        s_add_u32 s38, s38, {slot0}
        v_add_u32 v6, s38, v6         ; + wm*8192
        v_xor_b32 v1, v8, v5
        v_xor_b32 v2, 4, v1
        v_lshl_add_u32 v1, v1, 4, v6
        v_lshl_add_u32 v2, v2, 4, v6
        v_lshrrev_b32 v6, 5, v0       ; g>>1
        s_mov_b32 s39, 6144
        v_mul_lo_u32 v6, v6, s39
        v_and_b32 v8, 1, v8           ; g&1
        v_bfe_u32 v5, v0, 2, 2        ; r = i>>2
        v_lshl_add_u32 v5, v8, 3, v5  ; 8(g&1) + r
        v_lshl_add_u32 v6, v5, 7, v6
        v_and_b32 v5, 3, v0
        v_lshl_add_u32 v6, v5, 3, v6  ; + (i&3)*8
        v_add_u32 v6, {16384 + slot0}, v6
        v_bfe_u32 v5, v0, 3, 1        ; (r>>1)&1
        v_lshl_or_b32 v5, v8, 1, v5   ; swz
        s_lshl_b32 s38, s37, 1
        v_xor_b32 v5, s38, v5
        v_lshl_add_u32 v3, v5, 5, v6
        v_xor_b32 v5, 1, v5
        v_lshl_add_u32 v4, v5, 5, v6
        s_lshl_b32 s44, s34, 1
        s_add_u32 s44, s44, s37       ; head
        s_lshl_b32 s44, s44, 6
        s_lshl_b32 s45, {spos}, 2
        s_add_u32 s44, s44, s45
        s_lshl_b32 s45, s36, 1
        s_add_u32 s44, s44, s45
        s_lshl_b32 s65, s44, 12
        s_add_u32 s65, s65, {WS_KV + part*8*MB}
        s_mov_b32 s67, {f32(c):#x}
        v_and_b32 v5, 15, v0
        v_lshrrev_b32 v6, 4, v0
        v_lshlrev_b32 v5, 4, v5
        v_lshl_add_u32 v5, v6, 9, v5  ; g*512 + (l&15)*16
        s_mov_b32 s17, 0
        s_mov_b32 s48, 0
        """)
        for r in range(64, 160): a(f"v_mov_b32 v{r}, 0")
    XF = [8, 24]; WF = 40
    def acc(t, s):
        sec, cb = s >> 1, s & 1
        if sec < 2: return 64 + ((t * 2 + sec) * 2 + cb) * 4
        return 128 + (((t >> 1) * 2 + cb) * 2 + (t & 1)) * 4
    def rdx(buf, t, ks): return f"ds_read_b128 {vr(XF[buf]+4*t,4)}, v{1+ks} offset:{t*2048}"
    def rdw(s, half, ks):
        sec, cb = s >> 1, s & 1
        return f"ds_read_b64_tr_b16 {vr(WF+4*s+2*half,2)}, v{3+cb} offset:{ks*12288+sec*2048+half*512}"
    def relayout(qbase, kvbase, kvstep, qdst, nq_now):
        a(f"""
        s_waitcnt lgkmcnt(0)
        v_lshlrev_b32 v{VLANE}, 4, v0
        v_add_u32 v8, {qbase}, v5
        v_add_u32 v9, {kvbase}, v5
        v_and_b32 v10, 3, v0
        v_bfe_u32 v11, v0, 2, 2
        v_lshl_add_u32 v10, v11, 3, v10
        v_lshrrev_b32 v11, 4, v0
        v_lshlrev_b32 v10, 4, v10
        v_lshl_add_u32 v10, v11, 9, v10
        v_add_u32 v10, {kvbase}, v10
        v_add_u32 v11, {kvbase}, v{VLANE}
        """)
        for T in range(2):
            for tl in range(2):
                d = acc(2 * T + tl, 2)
                for r in range(4): a(f"v_cvt_pk_bf16_f32 v{d+r}, v{d+2*r}, v{d+2*r+1}")
                a(f"ds_write_b128 v10, {vr(d,4)} offset:{T*kvstep+tl*64}")
            for cb in range(2):
                d = acc(2 * T, 4 + cb)
                for r in range(4): a(f"v_cvt_pk_bf16_f32 v{d+r}, v{d+2*r}, v{d+2*r+1}")
                a(f"ds_write_b128 v9, {vr(d,4)} offset:{T*kvstep+2048+cb*256}")
            for k in range(4): a(f"ds_read_b128 {vr(F0+16*T+4*k,4)}, v11 offset:{T*kvstep+k*1024}")
        for t in range(4):
            d = acc(t, 0)
            for r in range(8): a(f"v_mul_f32 v{d+r}, s67, v{d+r}")
            for r in range(4): a(f"v_cvt_pk_bf16_f32 v{d+r}, v{d+2*r}, v{d+2*r+1}")
            a(f"ds_write_b128 v8, {vr(d,4)} offset:{(t>>1)*2048+(t&1)*256}")
            if t == 0:
                a("s_add_u32 s66, s65, 4096\ns_waitcnt lgkmcnt(1)")
                for T in range(2):
                    for k in range(4):
                        a(f"buffer_store_dwordx4 {vr(F0+16*T+4*k,4)}, v{VLANE}, s[12:15], s{65+T} offen offset:{k*1024} {SC}")
        a(f"v_add_u32 v11, {qbase}, v{VLANE}")
        for k in range(2 * nq_now): a(f"ds_read_b128 {vr(qdst+4*k,4)}, v11 offset:{k*1024}")
    BAR = 24 + 8
    RS = {}
    def put(i, op): RS.setdefault(i, []).append(op)
    put(0, ("w", 5, 0, rdw(5, 1, 0)))
    for s_ in range(6):
        put(4 * s_ + 3, ("w", s_, 1, rdw(s_, 0, 1))); put(4 * s_ + 4, ("w", s_, 1, rdw(s_, 1, 1)))
    for t in range(4): put(1 + 4 * t, ("x", t, 1, rdx(1, t, 1)))
    order = [("w", 0, 0, rdw(0, 0, 0)), ("w", 0, 0, rdw(0, 1, 0))] + [("x", t, 0, rdx(0, t, 0)) for t in range(4)]
    for s_ in range(1, 6): order += [("w", s_, 0, rdw(s_, 0, 0)), ("w", s_, 0, rdw(s_, 1, 0))]
    pos = BAR + 1
    for op in order[:-1]:
        if op[0] == "w": pos = max(pos, 24 + 4 * op[1] + 3)
        assert pos <= 47
        put(pos, op); pos += 1
    def steady(): return [op[:3] for op in order[:-1]][3:]
    def first_frags():
        for t in range(4): a(rdx(0, t, 0))
        for s in range(6):
            a(rdw(s, 0, 0)); a(rdw(s, 1, 0))
        a("s_waitcnt lgkmcnt(0)")
    VADV = ["v_add_u32 v3, s3, v3", "v_add_u32 v1, s3, v1", "v_add_u32 v4, s3, v4", "v_add_u32 v2, s3, v2"]
    def stage(MISC):
        LQ = steady()
        for i in range(48):
            ks, s_, t = i // 24, (i % 24) >> 2, i & 3
            x, w = XF[ks] + 4 * t, WF + 4 * s_
            a(mfma16(acc(t, s_), w, x) if s_ < 4 else mfma16(acc(t, s_), x, w))
            n = (i + 1) % 48
            need = [("w", (n % 24) >> 2, n // 24), ("x", n & 3, n // 24)]
            idx = [j for j, e in enumerate(LQ) if e in need]
            if idx:
                a(f"s_waitcnt lgkmcnt({len(LQ) - 1 - max(idx)})")
                del LQ[:max(idx) + 1]
            for op in RS.get(i, []):
                a(op[3]); LQ.append(op[:3])
            for op in MISC.get(i, []):
                a(op)
                if "lgkmcnt(0)" in op: LQ.clear()
                elif op.startswith("ds_"): LQ.append(("f", 0, 0))
        assert LQ == steady()

    LEAD = OPT["q_lead"]
    def loader_setup():
        a(f"""
        v_lshrrev_b32 v1, 3, v0       ; l>>3
        v_and_b32 v2, 7, v0           ; l&7
        v_lshrrev_b32 v3, 4, v0       ; l>>4
        s_lshl_b32 s37, s33, 7
        s_lshl_b32 s38, s59, 5
        s_add_u32 s37, s37, s38
        v_add_u32 v4, s37, v1
        v_lshlrev_b32 v4, 11, v4      ; row*2048
        v_xor_b32 v5, v2, v3
        v_xor_b32 v6, 4, v5
        v_lshl_add_u32 v{DX}, v5, 4, v4
        v_lshl_add_u32 v6, v6, 4, v4
        """)
        for n in range(1, 4):
            a(f"v_add_u32 v{DX+n}, {n*16384 - n*1024}, v{6 if n & 1 else DX}")
        a("""
        s_lshl_b32 s38, s59, 4
        v_add_u32 v4, s38, v1
        s_mov_b32 s39, 6144
        v_mul_lo_u32 v4, v4, s39
        v_and_b32 v3, 1, v3
        v_lshlrev_b32 v3, 1, v3
        v_xor_b32 v5, v2, v3          ; jj = 0
        v_xor_b32 v6, 4, v5           ; jj = 1
        s_lshl_b32 s38, s34, 7        ; nt*128
        v_add_u32 v4, s38, v4
        v_lshl_add_u32 v5, v5, 4, v4
        v_lshl_add_u32 v6, v6, 4, v4
        """)
        for sec in range(3):
            for jj in range(2):
                p = sec * 2 + jj
                a(f"v_add_u32 v{DW+p}, {sec*2048 + jj*8*6144 - (p % 3)*1024}, v{5+jj}")
        a("""
        s_lshl_b32 s40, s59, 12
        s_mul_i32 s41, s59, 6144
        s_add_u32 s41, s41, 16384     ; W lds
        s_add_u32 s58, s34, s33
        s_and_b32 s58, s58, 3         ; class
        """)
        LEAD = OPT["q_lead"]
        def korder(c_, first):
            pref = ([(c_ + i) & 3 for i in range(4)] + list(range(4, 16))) if first else list(range(16))
            seq = []
            for p in range(16):
                if (p >= 1 or not first) and (p & 3) == c_ and p + LEAD <= 15 and (p + LEAD) not in seq: k = p + LEAD
                else: k = next(x for x in pref if x not in seq)
                seq.append(k)
            assert sorted(seq) == list(range(16))
            return seq
        tabs = []
        for c_ in range(4):
            seq = korder(c_, True) + korder(c_, not OPT["q_touch"])
            tabs.append([sum(seq[8 * w + i] << (4 * i) for i in range(8)) for w in range(4)])
        for w in range(4): a(f"s_mov_b32 s{60+w}, {tabs[0][w]:#x}")
        for c_ in range(1, 4):
            a(f"s_cmp_eq_u32 s58, {c_}")
            for w in range(4): a(f"s_cselect_b32 s{60+w}, {tabs[c_][w]:#x}, s{60+w}")

    loader_setup()
    a("s_waitcnt lgkmcnt(0)")
    srd(a, 4, "s24", "s25", 2048 * 1024 * 2)
    srd(a, 8, "s26", "s27", 1024 * 3072 * 2)
    DMA = [f"buffer_load_dwordx4 v{DX+n}, s[4:7], s42 offen offset:{n*1024} lds" for n in range(4)] + \
          [f"buffer_load_dwordx4 v{DW+p}, s[8:11], s43 offen offset:{(p%3)*1024} lds" for p in range(6)]
    def ld(s):
        base = (s % 3) * G2_SLOT
        if s == 16:
            a("s_mov_b32 s4, s20\ns_mov_b32 s5, s21\ns_mov_b32 s8, s22\ns_mov_b32 s9, s23")
        a(f"""
        s_bfe_u32 s44, s{60 + s // 8}, {(4 << 16) | (4 * (s % 8)):#x}
        s_add_u32 m0, s40, {base}
        s_lshl_b32 s42, s44, 7
        s_mul_i32 s43, s44, {64*6144}
        """)
        for i in range(10):
            if i == 4: a(f"s_add_u32 m0, s41, {base}\ns_nop 0")
            if i == 7: a(f"s_add_u32 m0, s41, {base+3072}\ns_nop 0")
            a(DMA[i])
    srd(a, 12, "s28", "s29", WS_SIZE)
    ld(0)
    TCH = OPT["q_touch"]
    if TCH:
        a(f"""
        v_mul_lo_u32 v{DT}, v0, s39
        s_lshl_b32 s50, s59, 11
        s_add_u32 s50, s50, s38
        v_add_u32 v{DT}, s50, v{DT}
        s_lshl_b32 s51, s33, 7
        v_add_u32 v{DT+1}, s51, v0
        v_lshlrev_b32 v{DT+1}, 11, v{DT+1}
        s_cmp_eq_u32 s59, 3
        s_cselect_b32 s52, s20, s22
        s_cselect_b32 s53, s21, s23
        s_cselect_b32 s54, s6, s10
        s_mov_b32 s55, 0x00020000
        s_mov_b32 s51, {64*6144}
        s_cselect_b32 s51, 128, s51
        s_cselect_b32 s56, {64*2048}, 0
        s_cselect_b64 vcc, -1, 0
        v_cndmask_b32 v{DT}, v{DT}, v{DT+1}, vcc
        """)
    gemm_setup(G2_SLOT, 0, "s33")
    a(f"v_lshlrev_b32 v{VFL}, 2, v0\nv_add_u32 v{VFL}, {FLAGS + 512}, v{VFL}")
    ld(1)
    q = [0] * 10 + [1] * 10
    VE, VEO = 248, DT + 3
    for s in range(17):
        last = max(i for i, x in enumerate(q) if x == s)
        a(f"s_waitcnt vmcnt({len(q) - 1 - last})")
        if s == 11:
            a(f"""
            s_cmp_lg_u32 s16, 4
            s_cbranch_scc1 L_ent_done
            s_mov_b32 s100, {SPIN_MAX}
            L_ent:
            v_cmp_ne_u32 vcc, 0, v{VE+2}
            s_cbranch_vccnz L_ent_ok
            s_sleep 16
            global_load_dwordx4 {vr(VE,4)}, v{VEO}, s[18:19] sc1
            s_waitcnt vmcnt(0)
            s_sub_u32 s100, s100, 1
            s_cbranch_scc0 L_ent
            L_ent_ok:
            v_mov_b32 v{VEO}, {FLAGS + 768}
            ds_write_b64 v{VEO}, {vr(VE,2)}
            s_waitcnt lgkmcnt(0)
            L_ent_done:
            """)
        a("s_barrier")
        if STAMP: a(f"s_memtime s[96:97]\ns_waitcnt lgkmcnt(0)\nv_writelane_b32 v7, s96, {8+s}")
        q = q[last + 1:]
        p = s + 2
        if s == 9:
            a(f"""
            v_mov_b32 v{VEO}, 0
            s_cmp_lg_u32 s16, 4
            s_cbranch_scc1 L_ent_skip
            global_load_dwordx4 {vr(VE,4)}, v{VEO}, s[18:19] sc1
            L_ent_skip:
            """)
        if TCH and 16 - LEAD <= p < 16:
            a(f"""
            s_cmp_lg_u32 s58, {p & 3}
            s_cbranch_scc1 L_q_nt{p}
            s_mul_i32 s50, s51, {p + LEAD - 16}
            buffer_load_dword v{DT+2}, v{DT}, s[52:55], s50 offen
            s_add_u32 s50, s50, s56
            buffer_load_dword v{DT+2}, v{DT}, s[52:55], s50 offen
            L_q_nt{p}:
            """)
        if s == 16:
            st(2)
            if OPT["ykill"]: a("s_endpgm")
            a(f"s_setprio {OPT['yprio']}")
            for t in range(4): a(rdx(0, t, 0))
            for s_ in range(6):
                a(rdw(s_, 0, 0)); a(rdw(s_, 1, 0))
        ld(p); q += [p] * 10
    a(f"""
    s_lshr_b64 s[62:63], s[62:63], 12
    s_mov_b32 s31, {G2_SLOT}
    s_mov_b32 s45, 1
    s_mov_b32 s57, {G2_SLOT}
    s_waitcnt lgkmcnt(0)
    """)
    ROT = [["s_add_u32 s17, s17, 1", "s_add_u32 s45, s45, 1"],
           ["s_cmp_eq_u32 s45, 3", f"s_cselect_b32 s3, {(-2*G2_SLOT) & 0xffffffff:#x}, s31"],
           ["s_cselect_b32 s45, 0, s45", VADV[0]], VADV[1:3], VADV[3:]]
    def ymisc(tag, dma, endcmp):
        M = {}
        def add(i, ops): M.setdefault(i, []).extend(ops)
        for i, ops in enumerate(ROT): add(25 + i, ops)
        add(29, [f"s_waitcnt vmcnt({10 if dma else 0}) lgkmcnt(0)"] + arrive(4))
        add(30, [RDCNT])
        add(32, ["s_waitcnt lgkmcnt(0)", f"v_cmp_gt_u32 vcc, s48, v{VCNT}", f"s_cbranch_vccnz L_ys_{tag}", f"L_ysd_{tag}:"])
        def o(tag=tag):
            a(f"L_ys_{tag}:"); spin_lds("y" + tag); a(f"s_branch L_ysd_{tag}")
        ool.append(o)
        if dma:
            add(31, ["s_and_b32 s44, s62, 15", "s_lshr_b64 s[62:63], s[62:63], 4", "s_lshl_b32 s42, s44, 7", f"s_mul_i32 s43, s44, {64*6144}",
                     "s_add_u32 m0, s40, s57"])
            pos = 33
            for i in range(10):
                if i == 4: add(pos, ["s_add_u32 s50, s41, s57", "s_mov_b32 m0, s50"]); pos += 1
                if i == 7: add(pos, ["s_add_u32 m0, s50, 3072"]); pos += 1
                add(pos, ([f"s_waitcnt vmcnt({THR})"] if THR < 20 else []) + [DMA[i]]); pos += 1
            add(45, ["s_add_u32 s57, s57, s3"])
        add(46, [endcmp])
        return M
    a(".p2align 6\nL_y_loop:")
    stage(ymisc("a", True, "s_cmp_lt_u32 s17, 13"))
    a("s_cbranch_scc1 L_y_loop")
    a(".p2align 6\nL_y_loop2:")
    stage(ymisc("b", False, "s_cmp_lt_u32 s17, 16"))
    a("s_cbranch_scc1 L_y_loop2")
    st(3)
    a(f"""
    s_mul_i32 s38, s37, 49152
    s_lshl_b32 s39, s36, 13
    s_add_u32 s39, s39, s38       ; + wm*8192
    s_add_u32 s40, s39, 32768
    s_lshl_b32 s41, s59, 12
    s_add_u32 s41, s41, {96*1024}
    s_load_dwordx2 s[20:21], s[0:1], 16
    s_load_dwordx2 s[22:23], s[0:1], 40
    """)
    relayout("s41", "s40", 4096, QQ[0], 2)
    a("s_mov_b32 s42, s65")
    get_nonce()
    flag_base(0, "s33")
    attn_consts(True)
    a(f"""
    s_lshl_b32 s50, 1, s33
    s_lshr_b32 s51, s50, 1
    s_lshr_b32 s50, s50, 2
    s_or_b32 s51, s51, s50
    s_mov_b32 s56, 0
    s_waitcnt vmcnt(0)
    """)
    publish()
    st(4)
    a(f"""
    s_and_b32 s50, s33, 7
    s_lshl_b32 s50, s50, 1
    s_add_u32 s50, s50, s37
    s_lshl_b32 s50, s50, 17
    s_lshl_b32 s44, s34, 7
    s_add_u32 s50, s50, s44
    v_lshlrev_b32 v{VK}, 11, v0
    s_cmp_eq_u32 s36, 0
    s_cselect_b32 s4, s20, s22
    s_cselect_b32 s5, s21, s23
    s_mov_b32 s6, {1024*1024*2:#x}
    s_mov_b32 s7, 0x00020000
    """)
    if OPT["wot"]: a(f"buffer_load_dword v{VK}, v{VK}, s[4:7], s50 offen")
    if OPT["ydelay"]: a(f"s_sleep {OPT['ydelay']}")
    poll("a", "s51", OPT["ysleep"])
    st(5)
    for g in (1, 2):
        a(f"s_cmp_lt_u32 s33, {g}\ns_cbranch_scc1 L_y_nowin")
        for T in range(2):
            a(f"s_add_u32 m0, s39, {(8 - 4*g + T) * 4096}\ns_sub_u32 s50, s42, {g*16384 - T*4096}")
            for k in range(4): a(f"buffer_load_dwordx4 v{VLANE}, s[12:15], s50 offen offset:{k*1024} {HL} lds")
    a(f"""
    L_y_nowin:
    s_lshl_b32 s58, s33, 2
    s_lshl_b32 s50, s36, 1
    s_add_u32 s58, s58, s50
    s_lshl_b32 s41, s58, 5
    s_lshl_b32 s50, s34, 1
    s_add_u32 s41, s41, s50
    s_add_u32 s41, s41, s37
    s_lshl_b32 s41, s41, 11
    s_add_u32 s41, s41, {WS_O}    ; O offset
    s_mov_b32 s43, 0
    s_waitcnt vmcnt(0) lgkmcnt(0)
    """)
    for r in range(8): a(f"v_mov_b32 v{QF+r}, v{QQ[0]+r}")
    group_sync("y3", 4, 4)
    a(f"s_setprio {OPT['yprio']}")
    st(6)

    def sm32(d, A, B): return f"v_smfmac_f32_32x32x32_bf16 {vr(d,16)}, {vr(A,4)}, {vr(B,8)}, v{IDX}"
    def sm16(d, A, B): return f"v_smfmac_f32_16x16x64_bf16 {vr(d,4)}, {vr(A,4)}, {vr(B,8)}, v{IDX}"
    def rowmax_negm(s, nm):
        a(f"v_max3_f32 v{T0}, v{s}, v{s+1}, v{s+2}")
        for r in range(3, 15, 2): a(f"v_max3_f32 v{T0}, v{T0}, v{s+r}, v{s+r+1}")
        a(f"""
        v_max_f32 v{T0}, v{T0}, v{s+15}
        v_mov_b32 v{T1}, v{T0}
        s_nop 1
        v_permlane32_swap_b32 v{T0}, v{T1}
        s_nop 1
        v_max_f32 v{T0}, v{T0}, v{T1}
        v_add_f32 v{T0}, s47, v{T0}
        v_sub_f32 v{nm}, 0, v{T0}
        """)
        for r in range(1, 16): a(f"v_mov_b32 v{nm+r}, v{nm}")
    def normalise_store(o, l, pk, ooff, tag, slow_args):
        a(f"v_mul_f32 v{T0}, 0, v{l}")
        for r in range(16): a(f"v_fma_f32 v{T0}, v{o+r}, 0, v{T0}")
        a(f"""
        v_rcp_f32 v{T1}, v{l}
        v_cmp_u_f32 vcc, v{T0}, v{T0}
        s_nop 1
        s_cbranch_vccz L_ok_{tag}
        {slow_args}
        s_call_b64 s[52:53], L_slow
        """)
        if o != O:
            for r in range(16): a(f"v_mov_b32 v{o+r}, v{O+r}")
        a(f"v_rcp_f32 v{T1}, v{L}\ns_nop 0\nL_ok_{tag}:")
        for r in range(16): a(f"v_mul_f32 v{o+r}, v{T1}, v{o+r}")
        for r in range(8): a(f"v_cvt_pk_bf16_f32 v{pk+r}, v{o+2*r}, v{o+2*r+1}")
        a(f"""
        buffer_store_dwordx4 {vr(pk,4)}, v{VLANE}, s[12:15], {ooff} offen {ASC}
        buffer_store_dwordx4 {vr(pk+4,4)}, v{VLANE}, s[12:15], {ooff} offen offset:1024 {ASC}
        """)

    rescue_sites = []
    def tile_iter(i, q, rdVb, rdK, rdVa, first=False, cblk=NM, pre_qk=None, do_qk=True, chk=None):
        s, sp = S[i & 1], S[(i + 1) & 1]
        e = [f"v_exp_f32 v{s+r}, v{s+r}" for r in range(16)]
        a(e[0]); a(e[1])
        if not first: a(sm32(O, VB, sp + 8))
        a(rdVb)
        a(e[2]); a(e[3]); a(e[4])
        if not first: a(sm16(L, AS, sp + 8))
        a("s_waitcnt lgkmcnt(3)")
        if pre_qk: pre_qk()
        a(e[5])
        if do_qk: a(mfma(sp, KF, q, cblk))
        a("s_waitcnt lgkmcnt(2)")
        a(rdK[0])
        a(e[6]); a(e[7]); a(e[8])
        if do_qk: a(mfma(sp, KF + 4, q + 4))
        a("s_waitcnt lgkmcnt(2)")
        a(rdK[1])
        a(e[9]); a(e[10]); a(e[11])
        a(sm32(O, VA, s))
        a(rdVa)
        a(e[12]); a(e[13])
        if chk: a(f"v_cmp_lt_f32 vcc, s46, v{L}")
        a(e[14])
        a(sm16(L, AS, s))
        a("s_waitcnt lgkmcnt(3)")
        if chk:
            a(f"s_cbranch_vccnz L_resc_{chk}")
            a(f"L_back_{chk}:")
            rescue_sites.append((i & 1, chk))
        a(e[15])
    a("L_ya_unit:")
    zero_acc()
    a(f"""
    v_add_u32 v{VK}, s39, v{VLANE}
    s_add_u32 s45, s58, 1
    s_cmp_lt_u32 s58, 8
    s_cselect_b32 s45, s45, 99
    s_cmp_eq_u32 s45, 1
    s_cselect_b32 s50, 4096, 0
    v_add_u32 v{VKN}, s50, v{VK}
    """)
    J = [7, 8, 6, 5, 4, 3, 2, 1, 0]
    a(f"""
    ds_read_b128 {vr(KF,4)}, v{VKN} offset:{J[0]*4096}
    ds_read_b128 {vr(KF+4,4)}, v{VKN} offset:{J[0]*4096+1024}
    s_waitcnt lgkmcnt(0)
    {mfma(S[0], KF, QF, "0")}
    {mfma(S[0], KF+4, QF+4)}
    ds_read_b128 {vr(KF,4)}, v{VK} offset:{J[1]*4096}
    ds_read_b128 {vr(KF+4,4)}, v{VK} offset:{J[1]*4096+1024}
    ds_read_b128 {vr(VA,4)}, v{VKN} offset:{J[0]*4096+2048}
    s_nop 12
    s_cmp_lg_u32 s45, 1
    s_cbranch_scc1 L_a_nofix0
    """)
    for r in range(16): a(f"v_cndmask_b32 v{S[0]+r}, v{S[0]+r}, v{T2}, {sr(64+2*r,2)}")
    a("L_a_nofix0:")
    rowmax_negm(S[0], NM)
    for r in range(16): a(f"v_add_f32 v{S[0]+r}, v{NM}, v{S[0]+r}")
    inval_sites = []
    for i in range(9):
        def rda(reg, t, sub):
            t = min(t, 8)
            return f"ds_read_b128 {vr(reg,4)}, v{VKN if t == 0 else VK} offset:{J[t]*4096+sub*1024}"
        def pre(i=i):
            if i + 1 <= 8:
                a(f"s_cmp_eq_u32 s45, {i+1}\ns_cbranch_scc1 L_a_inv{i}\nL_a_val{i}:")
                inval_sites.append(i)
            if i == 0:
                for r in range(16): a(f"v_cndmask_b32 v{MK+r}, v{NM+r}, v{T2}, {sr(64+2*r,2)}")
                a("s_nop 0")
            if i == 7:
                for r in range(16): a(f"v_cndmask_b32 v{MK+r}, v{T2}, v{NM+r}, {sr(64+2*r,2)}")
                a("s_nop 0")
        tile_iter(i, QF, rda(VB, i, 3), [rda(KF, i + 2, 0), rda(KF + 4, i + 2, 1)], rda(VA, i + 1, 2), first=(i == 0),
                  cblk=(MK if i in (0, 7) else NM), pre_qk=pre, do_qk=(i < 8), chk=(f"a{i}" if i in (2, 5) else None))
    a(f"""
    s_waitcnt lgkmcnt(0)
    s_nop 1
    {sm32(O, VB, S[0] + 8)}
    {sm16(L, AS, S[0] + 8)}
    s_nop 12
    """)
    normalise_store(O, L, OO[0], "s41", "a", f"""
    s_min_u32 s55, s45, 9
    s_sub_u32 s54, s55, 1
    s_lshl_b32 s54, s54, 12
    s_sub_u32 s54, s42, s54
    s_cmp_eq_u32 s55, 9
    s_cselect_b32 s57, 1, 2""")
    for r in range(8): a(f"v_mov_b32 v{QF+r}, v{QQ[1]+r}")
    a(f"""
    s_add_u32 s39, s39, 4096
    s_add_u32 s42, s42, 4096
    s_add_u32 s41, s41, {32*2048}
    s_add_u32 s58, s58, 1
    s_add_u32 s43, s43, 1
    s_cmp_lt_u32 s43, 2
    s_cbranch_scc1 L_ya_unit
    """)
    st(7)
    if OPT["fuse"]:
        PW = [12, 13, 14, 15]
        PD, PS, PE = 10, 11, 16
        ACC, WFr, OFr = 32, 64, 96
        a(f"""
        s_load_dwordx2 s[24:25], s[0:1], 48
        v_lshrrev_b32 v16, 5, v0          ; h
        v_bfe_u32 v17, v0, 2, 2           ; r = i>>2
        v_lshl_add_u32 v18, v16, 2, v17   ; row = 4h + r
        v_lshlrev_b32 v18, 7, v18
        v_and_b32 v19, 1, v0              ; h'
        v_lshlrev_b32 v19, 2, v19
        v_bfe_u32 v16, v0, 4, 1           ; g>>1
        v_or_b32 v19, v19, v16
        v_and_b32 v16, 2, v17
        v_xor_b32 v19, v19, v16
        v_bfe_u32 v16, v0, 1, 1           ; g&1
        v_lshl_add_u32 v18, v16, 3, v18
        v_lshl_add_u32 v{PW[0]}, v19, 4, v18
        v_xor_b32 v{PW[1]}, 32, v{PW[0]}
        v_add_u32 v{PW[2]}, 0x10000, v{PW[0]}
        v_add_u32 v{PW[3]}, 0x10000, v{PW[1]}
        v_lshrrev_b32 v16, 3, v0
        v_and_b32 v17, 7, v0
        v_bfe_u32 v18, v0, 4, 1
        v_lshlrev_b32 v18, 1, v18
        v_xor_b32 v18, v17, v18
        s_lshl_b32 s50, s59, 4
        v_add_u32 v19, s50, v16
        v_lshlrev_b32 v19, 11, v19
        v_lshl_add_u32 v{PD}, v18, 4, v19
        s_lshl_b32 s50, s34, 7
        v_add_u32 v{PD}, s50, v{PD}
        v_add_u32 v9, {8*2048 - 1024}, v{PD}
        v_xor_b32 v17, v16, v17
        s_lshl_b32 s50, s33, 7
        s_lshl_b32 s51, s59, 5
        s_add_u32 s50, s50, s51
        v_add_u32 v16, s50, v16
        v_lshlrev_b32 v16, 12, v16
        v_lshl_add_u32 v{PS}, v17, 4, v16
        s_lshl_b32 s58, s34, 7
        s_and_b32 s38, s34, 3
        s_lshl_b32 s38, s38, 2
        s_lshl_b32 s39, s33, 2
        s_add_u32 s39, s39, s59
        s_lshl_b32 s39, s39, 16
        s_add_u32 s39, s39, {WS_O}
        s_lshl_b32 s40, s59, 11
        s_mov_b32 s43, 0
        s_mov_b32 s4, s20
        s_mov_b32 s5, s21
        s_mov_b32 s6, {1024*1024*2:#x}
        s_mov_b32 s7, 0x00020000
        """)
        oflag_base(2)
        a("s_waitcnt vmcnt(0) lgkmcnt(0)")
        srd(a, 8, "s24", "s25", 2048 * 2048 * 2)
        publish()
        a("L_yp_part:")
        group_sync("p0", 4, 2)
        def wdma(slot_expr, j_expr):
            a(f"""
            s_add_u32 s50, s38, {j_expr}
            s_and_b32 s50, s50, 15
            s_add_u32 m0, s40, {slot_expr}
            s_lshl_b32 s50, s50, 17
            buffer_load_dwordx4 v{PD}, s[4:7], s50 offen lds
            buffer_load_dwordx4 v9, s[4:7], s50 offen offset:1024 lds
            """)
        a(f"""
        s_and_b32 s44, s33, 7
        s_lshl_b32 s44, s44, 1
        s_mov_b32 s45, 0
        L_yp_w:
        s_lshl_b32 s51, s44, 13
        s_waitcnt vmcnt({OPT['wthr']})
        """)
        wdma("s51", "s44")
        a(f"""
        s_add_u32 s44, s44, 1
        s_cmp_eq_u32 s44, 15
        s_cselect_b32 s44, 0, s44
        s_add_u32 s45, s45, 1
        s_cmp_lt_u32 s45, 15
        s_cbranch_scc1 L_yp_w
        s_mov_b32 s56, 0
        """)
        for r in range(32): a(f"v_mov_b32 v{ACC+r}, 0")
        a("s_waitcnt vmcnt(0)")
        group_sync("p1", 4, 2)
        a(f"""
        s_cmp_eq_u32 s43, 0
        s_cbranch_scc1 L_yp_go
        v_subrev_u32 v{PE}, 512, v{VFL}
        s_mov_b32 s100, {SPIN_MAX * 16}
        L_yp_wx:
        ds_read_b32 v{VCNT}, v{PE}
        s_waitcnt lgkmcnt(0)
        v_cmp_le_u32 vcc, 6, v{VCNT}
        s_cbranch_vccnz L_yp_go0
        s_sleep 8
        s_sub_u32 s100, s100, 1
        s_cbranch_scc0 L_yp_wx
        L_yp_go0:
        s_sleep {OPT['pdelay']}
        L_yp_go:
        """)
        st.dyn("s43", 3, 26)
        PQ = []
        def oload(j):
            a(f"""
            s_add_u32 s50, s38, {j}
            s_and_b32 s50, s50, 15
            s_lshl_b32 s51, s50, 1
            s_lshl_b32 s51, 3, s51
            s_and_b32 s101, s56, s51
            s_cmp_eq_u32 s101, s51
            s_cbranch_scc0 L_ypw_{j}
            L_ypwd_{j}:
            s_lshl_b32 s50, s50, 12
            s_add_u32 s50, s50, s39
            """)
            def o(j=j):
                a(f"L_ypw_{j}:"); poll(f"p{j}", "s51", OPT["psleep"], lanes=32); a(f"s_branch L_ypwd_{j}")
            ool.append(o)
            return [(j, f"buffer_load_dwordx4 {vr(OFr + 16*(j%8) + 4*k, 4)}, v{VLANE}, s[12:15], s50 offen offset:{k*1024} {HL}") for k in range(4)]
        def wread(u):
            j, ks = u >> 2, u & 3
            slot = j if j < 15 else 0
            off = slot * 8192 + ks * 2048
            hi = 2 if off >= 65536 else 0
            off &= 0xffff
            b_ = WFr + 8 * (u & 3)
            return [f"ds_read_b64_tr_b16 {vr(b_ + 4*b + 2*h, 2)}, v{PW[hi + b]} offset:{off + h*1024}" for b in range(2) for h in range(2)]
        PDEP = OPT["pdepth"]
        for j in range(PDEP):
            for tagj, op in oload(j): a(op); PQ.append(tagj)
        a(f"s_setprio {OPT['pprio']}")
        st.dyn("s43", 3, 27)
        LQ = []
        for u in range(2):
            for op in wread(u): a(op); LQ.append(u)
        for u in range(64):
            j, ks = u >> 2, u & 3
            if ks == 0:
                k = max(i for i, x in enumerate(PQ) if x == j)
                a(f"s_waitcnt vmcnt({len(PQ) - 1 - k})"); del PQ[:k + 1]
                pend = oload(j + PDEP) if j + PDEP < 16 else []
            k = max(i for i, x in enumerate(LQ) if x == u)
            a(f"s_waitcnt lgkmcnt({len(LQ) - 1 - k})"); del LQ[:k + 1]
            if u == 58:
                a(f"v_cmp_gt_u32 vcc, s48, v{VCNT}\ns_cbranch_vccnz L_yps_b\nL_ypsd_b:")
                ool.append(lambda: (a("L_yps_b:"), spin_lds("pb"), a("s_branch L_ypsd_b")))
            rd_ = wread(u + 2) if u + 2 < 64 else []
            for b in range(2):
                a(mfma(ACC + 16 * b, WFr + 8 * (u & 3) + 4 * b, OFr + 16 * (j % 8) + 4 * ks))
                for op in rd_[2 * b:2 * b + 2]: a(op); LQ.append(u + 2)
                if b == 0 and pend:
                    tagj, op = pend.pop(0); a(op); PQ.append(tagj)
            if u in (6, 48):
                for op in arrive(4): a(op)
                LQ.append(-1)
            if u in (10, 54): a(RDCNT); LQ.append(-1)
            if u == 15:
                a(f"v_cmp_gt_u32 vcc, s48, v{VCNT}\ns_cbranch_vccnz L_yps_a\nL_ypsd_a:")
                ool.append(lambda: (a("L_yps_a:"), spin_lds("pa"), a("s_branch L_ypsd_a")))
                wdma("0", "15"); PQ += [-1, -1]
            if u == 47: assert -1 not in PQ
        a(f"""
        s_lshl_b32 s50, s59, 12
        s_add_u32 s50, s50, 8192
        v_and_b32 v{PE}, 31, v0
        v_lshrrev_b32 v{PE+1}, 5, v0
        v_lshlrev_b32 v{PE+1}, 2, v{PE+1}
        v_and_b32 v{PE+2}, 7, v0
        v_xor_b32 v{PE+1}, v{PE+1}, v{PE+2}
        v_lshlrev_b32 v{PE}, 7, v{PE}
        v_add_u32 v{PE}, s50, v{PE}
        v_lshl_add_u32 v{PE}, v{PE+1}, 4, v{PE}
        v_xor_b32 v{PE+1}, 16, v{PE}
        v_xor_b32 v{PE+2}, 32, v{PE}
        v_xor_b32 v{PE+3}, 48, v{PE}
        v_add_u32 v{PE+4}, s50, v{VLANE}
        s_mov_b32 s50, s58
        """)
        for b in range(2):
            d = ACC + 16 * b
            for r in range(8): a(f"v_cvt_pk_bf16_f32 v{d+r}, v{d+2*r}, v{d+2*r+1}")
            a(f"ds_write_b128 v{PE+2*b}, {vr(d,4)}\nds_write_b128 v{PE+2*b+1}, {vr(d+4,4)}")
        for i in range(4): a(f"ds_read_b128 {vr(WFr+4*i,4)}, v{PE+4} offset:{i*1024}")
        for i in range(4):
            a(f"s_waitcnt lgkmcnt({3-i})")
            a(f"buffer_store_dwordx4 {vr(WFr+4*i,4)}, v{PS}, s[8:11], s50 offen {OPT['p_sc']}")
            a("s_add_u32 s50, s50, 0x8000")
        st.dyn("s43", 3, 28)
        a(f"""
        s_setprio {OPT['yprio']}
        s_mov_b32 s4, s22
        s_mov_b32 s5, s23
        s_add_u32 s58, s58, 2048
        s_add_u32 s39, s39, {4*MB}
        s_add_u32 s49, s49, 131072
        s_add_u32 s43, s43, 1
        s_cmp_lt_u32 s43, 2
        s_cbranch_scc1 L_yp_part
        """)
    if STAMP: a("s_waitcnt vmcnt(0)")
    st(1)
    st.flush(T0)
    a("s_endpgm")

    a("L_x:")
    if OPT["icp"]:
        a("""
        s_getpc_b64 s[4:5]
        L_pc0:
        s_sub_u32 s4, s4, L_pc0-fused_kernel
        s_subb_u32 s5, s5, 0
        s_mov_b32 s6, L_code_end-fused_kernel
        s_mov_b32 s7, 0x00020000
        s_and_b32 s44, s31, 1
        s_lshl_b32 s44, s44, 2
        s_add_u32 s44, s44, s16
        s_lshl_b32 s44, s44, 13
        """)
        a(f"v_lshlrev_b32 v{DT}, 7, v0\nbuffer_load_dword v{DT}, v{DT}, s[4:7], s44 offen")
    a(f"""
    v_lshlrev_b32 v{VFL}, 2, v0
    v_add_u32 v{VFL}, {FLAGS}, v{VFL}
    v_mov_b32 v2, 0
    ds_write_b32 v{VFL}, v2
    ds_write_b32 v{VFL}, v2 offset:256
    ds_write_b32 v{VFL}, v2 offset:512
    s_and_b32 s50, s59, 1
    s_lshl_b32 s50, s50, 8
    v_add_u32 v{VFL}, s50, v{VFL}
    s_waitcnt lgkmcnt(0)
    """)
    srd(a, 12, "s28", "s29", WS_SIZE)
    st(0)
    a(f"""
    s_or_b32 s50, s2, s16
    s_cmp_lg_u32 s50, 0
    s_cbranch_scc1 L_x_noent
    v_mov_b32 v8, {WS_GEN}
    s_mov_b64 exec, 1
    buffer_load_dwordx2 v[12:13], v8, s[12:15], 0 offen sc1
    v_mov_b32 v14, 1
    v_mov_b32 v15, 1
    v_mov_b32 v9, 0
    s_waitcnt vmcnt(0)
    v_add_u32 v12, 1, v12
    buffer_store_dwordx2 v[12:13], v8, s[12:15], 0 offen sc1
    s_waitcnt vmcnt(0)
    global_store_dwordx4 v9, v[12:15], s[18:19] sc1
    s_mov_b64 exec, -1
    L_x_noent:
    s_and_b32 s35, s33, 7
    s_lshl_b32 s35, s35, 1
    s_lshr_b32 s50, s33, 3
    s_or_b32 s35, s35, s50
    """)
    if OPT["pret"]:
        flag_base(1, "s35")
        a(f"v_mov_b32 v{DT+1}, s32\nbuffer_load_dword v{DT+1}, v{DT+1}, s[12:15], 0 offen")
        flag_base(0, "s33")
        a(f"v_mov_b32 v{DT+2}, s32\nbuffer_load_dword v{DT+2}, v{DT+2}, s[12:15], 0 offen")
    gemm_setup(0, 1, "s35")
    if OPT["pret"] and OPT["fuse"]:
        for kind in (2, 3):
            oflag_base(kind)
            a(f"v_mov_b32 v{DT+1+kind}, s32\nbuffer_load_dword v{DT+1+kind}, v{DT+1+kind}, s[12:15], 0 offen")
    a(f"""
    s_mov_b32 s31, {G2_SLOT}
    s_mov_b32 s45, 0
    s_barrier
    """)
    st(1)
    first_frags()
    def xmisc(endcmp=None):
        M = {25 + i: ops for i, ops in enumerate(ROT)}
        M[31] = ["s_waitcnt lgkmcnt(0)"]; M[BAR] = ["s_barrier"]
        if endcmp: M[30] = [endcmp]
        return M
    a(".p2align 6\nL_x_loopB:")
    stage(xmisc()); stage(xmisc("s_cmp_lt_u32 s17, 16"))
    a("s_cbranch_scc1 L_x_loopB")
    st(2)
    a(f"s_setprio {OPT['xprio']}")
    a(f"""
    s_mul_i32 s43, s37, 19456
    s_add_u32 s43, s43, {XSCR}
    s_lshl_b32 s39, s36, 12
    s_add_u32 s40, s43, s39
    s_add_u32 s41, s40, 8192
    s_xor_b32 s39, s39, 4096
    s_add_u32 s39, s43, s39
    """)
    relayout("s40", "s41", 0, QQ[0], 2)
    for op in arrive(2): a(op)
    a(f"v_add_u32 v16, s39, v{VLANE}")
    get_nonce()
    flag_base(1, "s35")
    attn_consts(False)
    for r in range(64): a(f"v_mov_b32 v{OO[0]+r}, 0")
    a(f"""
    s_lshl_b32 s50, s35, 14
    s_sub_u32 s38, s65, s50
    s_lshl_b32 s56, 1, s35
    s_lshl_b32 s42, s33, 2
    s_lshl_b32 s50, s36, 1
    s_add_u32 s42, s42, s50
    s_lshl_b32 s42, s42, 5
    s_lshl_b32 s50, s34, 1
    s_add_u32 s42, s42, s50
    s_add_u32 s42, s42, s37
    s_lshl_b32 s42, s42, 11
    s_add_u32 s42, s42, {WS_O + 4*MB}    ; O offset
    """)
    spin_lds("x1")
    for k in range(4): a(f"ds_read_b128 {vr(QQ[2]+4*k,4)}, v16 offset:{k*1024}")
    st(3)
    def FR(f): return F0 + 4 * (f % NR)
    for pz in range(2):
        if pz == 1:
            a("s_waitcnt lgkmcnt(0)")
            for op in arrive(2): a(op)
            for r in list(range(12, 16)) + list(range(248, 256)): a(f"v_mov_b32 v{r}, 0")
        for z in range(2):
            j = (3, 2, 1, 0)[2 * pz + z] if False else (1, 0, 3, 2)[2 * pz + z]
            sj = S[j & 1]
            a(mfma(sj, FR(0), QQ[j], "0")); a(mfma(sj, FR(1), QQ[j] + 4))
        a("s_nop 10")
        for z in range(2):
            j = (1, 0, 3, 2)[2 * pz + z]
            rowmax_negm(S[j & 1], NN[j])
    VQ = []
    def vtile(i, j, loads=True, first=False, do_qk=True, chk=None, side=None):
        side = side or {}
        v = 4 * i + j
        s, sp = S[v & 1], S[(v + 1) & 1]
        jb, ib = (j - 1) & 3, (i if j else i - 1)
        jn, in_ = (j + 1) & 3, (i if j < 3 else i + 1)
        e = [f"v_exp_f32 v{s+r}, v{s+r}" for r in range(16)]
        def needf(f):
            fm = f % PER
            if fm in VQ:
                k = VQ.index(fm)
                a(f"s_waitcnt vmcnt({len(VQ) - 1 - k})"); del VQ[:k + 1]
                return True
            return False
        def freef(f):
            if not loads: return False
            g = f + NR
            a(f"buffer_load_dwordx4 {vr(FR(f),4)}, v{VLANE}, s[12:15], s60 offen offset:{(g & 3)*1024} {HL}")
            VQ.append(g % PER)
            return True
        def sd(k, did=True):
            for op in side.get(k, []): a(op); did = True
            if not did: a("s_nop 0")
        a(e[0]); a(e[1])
        if not first: a(sm32(OO[jb], FR(4 * ib + 3), sp + 8))
        sd(0)
        if j == 0 and not first: freef(4 * ib + 3)
        a(e[2]); a(e[3]); a(e[4])
        if not first: a(sm16(LL[jb], AS, sp + 8))
        needf(4 * in_); sd(1)
        a(e[5])
        if do_qk: a(mfma(sp, FR(4 * in_), QQ[jn], NN[jn]))
        needf(4 * in_ + 1); sd(2)
        if j == 2: freef(4 * i)
        a(e[6]); a(e[7]); a(e[8])
        if do_qk: a(mfma(sp, FR(4 * in_ + 1), QQ[jn] + 4))
        d = needf(4 * i + 2)
        if j == 2: d = freef(4 * i + 1) or d
        sd(3, d)
        a(e[9]); a(e[10]); a(e[11])
        a(sm32(OO[j], FR(4 * i + 2), s))
        d = freef(4 * i + 2) if j == 3 else False
        sd(4, d)
        a(e[12]); a(e[13])
        if chk: a(f"v_max3_f32 v{T0}, v{LL[0]}, v{LL[1]}, v{LL[2]}\nv_max_f32 v{T0}, v{T0}, v{LL[3]}\nv_cmp_lt_f32 vcc, s46, v{T0}")
        a(e[14])
        a(sm16(LL[j], AS, s))
        d = needf(4 * i + 3)
        if chk:
            a(f"s_cbranch_vccnz L_resc_{chk}\nL_back_{chk}:"); xres.append(chk); d = True
        sd(5, d)
        a(e[15])
    xres = []
    TPB = NR // 4 if NR % 4 == 0 else NR // 2
    TPB = max(TPB, 2)
    PER = 4 * TPB * 1000
    def start_pipe():
        a(mfma(S[0], FR(0), QQ[0], NN[0])); a(mfma(S[0], FR(1), QQ[0] + 4))
    def drain_pipe(i):
        a(f"s_nop 1\n{sm32(OO[3], FR(4 * i + 3), S[1] + 8)}\n{sm16(LL[3], AS, S[1] + 8)}")
    def pub():
        a("s_waitcnt vmcnt(0)")
        publish()
        a("s_setprio 0")
        st(4)
    a("s_nop 1"); start_pipe()
    if OPT["epub"]: pub()
    a("s_nop 12")
    for j in range(4): vtile(0, j, loads=False, first=(j == 0))
    if not OPT["epub"]: pub()
    for j in range(4): vtile(1, j, loads=False, do_qk=(j < 3), chk=None)
    drain_pipe(1)
    def tile_ptr(tag):
        return [["s_lshr_b32 s50, s44, 1"], ["s_add_u32 s50, s50, s35"], ["s_and_b32 s50, s50, 15"],
                ["s_bitcmp1_b32 s56, s50"], [f"s_cbranch_scc0 L_xw_{tag}", f"L_xwd_{tag}:"], ["s_lshl_b32 s50, s50, 14"],
                ["s_add_u32 s61, s38, s50"], ["s_and_b32 s50, s44, 1"], ["s_lshl_b32 s50, s50, 12"],
                ["s_add_u32 s44, s44, 1"], ["s_add_u32 s60, s61, s50"]]
    def wait_site(tag):
        def o():
            a(f"L_xw_{tag}:\ns_lshl_b32 s51, 1, s50")
            poll("x" + tag, "s51", OPT["xsleep"])
            a(f"s_branch L_xwd_{tag}")
        ool.append(o)
    a("s_mov_b32 s44, 2\ns_mov_b32 s45, 0")
    for f in range(NR - 1):
        if f % 4 == 0:
            for ops in tile_ptr(f"p{f}"):
                for op in ops: a(op)
            wait_site(f"p{f}")
        a(f"buffer_load_dwordx4 {vr(FR(f),4)}, v{VLANE}, s[12:15], s60 offen offset:{(f & 3)*1024} {HL}")
    for r in range(4): a(f"v_mov_b32 v{FR(NR-1)+r}, 0")
    for r in range(8): a(f"v_mov_b32 v{S[1]+8+r}, 0")
    a(f"s_waitcnt vmcnt({NR-3})")
    start_pipe()
    st(5)
    a("s_nop 12")
    PER = 4 * TPB
    assert PER % NR == 0 and 30 % TPB == 0
    PER = 2 * PER
    def body(base):
        for t in range(TPB):
            i = base + t
            sides = {j: {} for j in range(4)}
            frees = [(0, 0, 4 * (i - 1) + 3), (2, 2, 4 * i), (2, 3, 4 * i + 1), (3, 4, 4 * i + 2)]
            nxt = [(jj, k, f) for (jj, k, f) in frees if (f + NR) % 4 == 0][0]
            ops = tile_ptr(f"b{t}")
            if NR == 8: slots = [(0, 1), (0, 2), (0, 4), (1, 0), (1, 1), (1, 2), (1, 3), (1, 4), (1, 5), (2, 0), (2, 1)]
            else: slots = [(0, 1), (0, 2), (0, 4), (1, 0), (1, 1), (1, 2), (1, 3), (1, 4), (1, 5), (2, 0), (2, 5)]
            assert nxt[:2] == ((2, 2) if NR == 8 else (3, 4))
            if base == 0: wait_site(f"b{t}")
            for (jj, k), op in zip(slots, ops): sides[jj][k] = op
            if t == TPB - 1:
                sides[3][0] = ["s_add_u32 s45, s45, 1"]; sides[3][3] = [f"s_cmp_lt_u32 s45, {30 // TPB}"]
            for j in range(4): vtile(i, j, chk=(f"x{t}" if (j == 3 and t % 2 == 1) else None), side=sides[j])
    VQ[:] = list(range(2, NR - 1))
    a(".p2align 6\nL_x_loop:")
    body(0)
    assert VQ == [(f + PER // 2) % PER for f in range(2, NR - 1)], VQ
    a("s_cbranch_scc1 L_x_loop")
    st(6)
    drain_pipe(TPB - 1)
    VFL, VONE = 30, 31
    a(f"""
    s_lshl_b32 s50, s37, 8
    s_add_u32 s50, s50, {FLAGS}
    v_lshrrev_b32 v{VFL}, 2, v{VLANE}
    v_add_u32 v{VFL}, s50, v{VFL}
    v_mov_b32 v{VONE}, 1
    """)
    spin_lds("x1b")
    a(f"""
    s_mul_i32 s40, s36, 9216
    s_xor_b32 s41, s40, 9216
    s_add_u32 s40, s40, s43
    s_add_u32 s41, s41, s43
    v_add_u32 v16, s40, v{VLANE}
    v_add_u32 v17, s41, v{VLANE}
    v_mov_b32 v20, v{LL[2]}
    v_mov_b32 v21, v{NN[2]}
    v_mov_b32 v23, v{NN[3]}
    """)
    for k in range(4): a(f"ds_write_b128 v16, {vr(OO[2]+4*k,4)} offset:{k*1024}")
    a(f"s_nop 1\nv_mov_b32 v22, v{LL[3]}")
    for k in range(4): a(f"ds_write_b128 v16, {vr(OO[3]+4*k,4)} offset:{4096+k*1024}")
    a("ds_write_b128 v16, v[20:23] offset:8192")
    group_sync("x2", 2)
    a("ds_read_b128 v[20:23], v17 offset:8192")
    for k in range(8): a(f"ds_read_b128 {vr(NN[1]+16+4*k-16 if False else (OO[2]+4*k),4)}, v17 offset:{k*1024}")
    a("s_waitcnt lgkmcnt(8)")
    for j in range(2):
        l2, n2, g1, g2 = 20 + 2 * j, 21 + 2 * j, 24 + 2 * j, 25 + 2 * j
        a(f"""
        v_frexp_exp_i32_f32 v28, v{LL[j]}
        v_frexp_exp_i32_f32 v29, v{l2}
        v_cvt_f32_i32 v28, v28
        v_cvt_f32_i32 v29, v29
        v_sub_f32 v28, v28, v{NN[j]}
        v_sub_f32 v29, v29, v{n2}
        v_max_f32 v28, v28, v29
        v_add_f32 v{g1}, v{NN[j]}, v28
        v_add_f32 v{g2}, v{n2}, v28
        v_exp_f32 v{g1}, -v{g1}
        v_exp_f32 v{g2}, -v{g2}
        s_nop 0
        v_mul_f32 v{LL[j]}, v{g1}, v{LL[j]}
        v_fma_f32 v{LL[j]}, v{g2}, v{l2}, v{LL[j]}
        """)
        for r in range(16): a(f"v_mul_f32 v{OO[j]+r}, v{g1}, v{OO[j]+r}")
    a("s_waitcnt lgkmcnt(0)")
    for j in range(2):
        for r in range(16): a(f"v_fma_f32 v{OO[j]+r}, v{25+2*j}, v{OO[2+j]+r}, v{OO[j]+r}")
    a("s_lshl_b32 s50, s36, 13\ns_sub_u32 s38, s38, s50")
    for j in range(2):
        args = "s_mov_b32 s54, s38\ns_mov_b32 s55, 64\ns_mov_b32 s57, 0\n" + "\n".join(f"v_mov_b32 v{QF+r}, v{QQ[j]+r}" for r in range(8))
        normalise_store(OO[j], LL[j], NN[2] + 8 * j, "s42", f"b{j}", args)
        if j == 0: a(f"s_add_u32 s42, s42, {32*2048}")
    if OPT["fuse"]:
        oflag_base(3)
        a("s_waitcnt vmcnt(0)")
        publish()
    if STAMP: a("s_waitcnt vmcnt(0)")
    st(7)
    st.flush(T0)
    a("L_f_end:\ns_endpgm")
    VFL, VONE = 254, 255
    for o in ool: o()
    for i in inval_sites:
        a(f"L_a_inv{i}:\ns_nop 7")
        for r in range(16): a(f"v_mov_b32 v{NM+r}, v{T2}")
        a(f"s_nop 1\ns_branch L_a_val{i}")
    def rescale(o, l, nm):
        a(f"""
        v_frexp_exp_i32_f32 v{T0}, v{l}
        v_add_u32 v{T0}, {int(R_OFF)}, v{T0}     ; delta
        v_cvt_f32_i32 v{T1}, v{T0}
        v_sub_u32 v{T0}, 0, v{T0}
        """)
        for r in range(16): a(f"v_ldexp_f32 v{o+r}, v{o+r}, v{T0}")
        a(f"v_ldexp_f32 v{l}, v{l}, v{T0}")
        for r in range(16): a(f"v_sub_f32 v{nm+r}, v{nm+r}, v{T1}")
    def scale_p(s):
        for r in range(8, 15): a(f"v_ldexp_f32 v{s+r}, v{s+r}, v{T0}")
        a(f"v_sub_f32 v{s+15}, v{s+15}, v{T1}")
    def shift_s(s):
        for r in range(16): a(f"v_sub_f32 v{s+r}, v{s+r}, v{T1}")
    for par, tag in rescue_sites:
        a(f"L_resc_{tag}:\ns_nop 15")
        rescale(O, L, NM); scale_p(S[par]); shift_s(S[par ^ 1])
        a(f"s_nop 1\ns_branch L_back_{tag}")
    for tag in xres:
        a(f"L_resc_{tag}:\ns_call_b64 s[52:53], L_rescx\ns_branch L_back_{tag}")
    a("L_rescx:\ns_nop 15")
    for j in range(4):
        rescale(OO[j], LL[j], NN[j])
        if j == 0: shift_s(S[0])
        if j == 3: scale_p(S[1])
    a("s_nop 1\ns_setpc_b64 s[52:53]")
    s = S[0]; M = S[1]; AL = S[1] + 1
    a(f"L_slow:\ns_waitcnt vmcnt(0)\ns_nop 15\nv_mov_b32 v{M}, 0xff7fffff\ns_mov_b32 s50, 0")
    zero_acc()
    a("L_slow_loop:")
    for k in range(4): a(f"buffer_load_dwordx4 {vr(F0+4*k,4)}, v{VLANE}, s[12:15], s54 offen offset:{k*1024} {HL}")
    a(f"""
    s_waitcnt vmcnt(0)
    {mfma(s, KF, QF, "0")}
    {mfma(s, KF+4, QF+4)}
    s_nop 15
    s_cmp_eq_u32 s57, 1
    s_cbranch_scc0 L_slow_nm1
    s_cmp_eq_u32 s50, 0
    s_cbranch_scc0 L_slow_nm1
    """)
    for r in range(16): a(f"v_cndmask_b32 v{s+r}, v{T2}, v{s+r}, {sr(64+2*r,2)}")
    a(f"""
    L_slow_nm1:
    s_add_u32 s50, s50, 1
    s_cmp_eq_u32 s57, 0
    s_cbranch_scc1 L_slow_nm2
    s_cmp_eq_u32 s50, s55
    s_cbranch_scc0 L_slow_nm2
    """)
    for r in range(16): a(f"v_cndmask_b32 v{s+r}, v{s+r}, v{T2}, {sr(64+2*r,2)}")
    a("L_slow_nm2:")
    a(f"v_max3_f32 v{T0}, v{s}, v{s+1}, v{M}")
    for r in range(2, 16, 2): a(f"v_max3_f32 v{T0}, v{T0}, v{s+r}, v{s+r+1}")
    a(f"""
    v_mov_b32 v{T1}, v{T0}
    s_nop 1
    v_permlane32_swap_b32 v{T0}, v{T1}
    s_nop 1
    v_max_f32 v{T0}, v{T0}, v{T1}
    v_sub_f32 v{AL}, v{M}, v{T0}
    v_exp_f32 v{AL}, v{AL}
    v_mov_b32 v{M}, v{T0}
    """)
    for r in range(16): a(f"v_sub_f32 v{s+r}, v{s+r}, v{M}")
    for r in range(16): a(f"v_exp_f32 v{s+r}, v{s+r}")
    for r in range(16): a(f"v_mul_f32 v{O+r}, v{AL}, v{O+r}")
    a(f"""
    v_mul_f32 v{L}, v{AL}, v{L}
    s_nop 3
    {sm32(O, VA, s)}
    {sm32(O, VB, s+8)}
    {sm16(L, AS, s)}
    {sm16(L, AS, s+8)}
    s_nop 15
    s_add_u32 s54, s54, 4096
    s_cmp_lt_u32 s50, s55
    s_cbranch_scc1 L_slow_loop
    s_setpc_b64 s[52:53]
    """)
    return kdesc(K, 256)

PJ_NB = 4
PJ_LDS = PJ_NB * 32768

def gen_proj(a):
    K = "proj_kernel"
    kstart(a, K)
    a("""
    s_cmp_ge_u32 s2, 256
    s_cbranch_scc1 L_p_end
    s_load_dwordx2 s[20:21], s[0:1], 16
    s_load_dwordx2 s[22:23], s[0:1], 40
    s_load_dwordx2 s[24:25], s[0:1], 48
    s_load_dwordx2 s[28:29], s[0:1], 64
    v_lshrrev_b32 v1, 6, v0
    v_and_b32 v0, 63, v0
    s_and_b32 s30, s2, 7
    s_lshr_b32 s31, s2, 3
    v_readfirstlane_b32 s16, v1
    s_lshr_b32 s32, s30, 2        ; part
    s_and_b32 s33, s30, 3
    s_lshl_b32 s33, s33, 2
    s_and_b32 s34, s31, 3
    s_add_u32 s33, s33, s34       ; mt (0..15)
    s_lshr_b32 s34, s31, 2        ; nt (0..7)
    s_waitcnt lgkmcnt(0)
    s_cmp_eq_u32 s32, 0
    s_cselect_b32 s20, s20, s22
    s_cselect_b32 s21, s21, s23
    """)
    srd(a, 4, "s20", "s21", 1024 * 1024 * 2)
    srd(a, 8, "s24", "s25", 2048 * 2048 * 2)
    srd(a, 12, "s28", "s29", WS_SIZE)
    a("""
    s_cmp_ge_u32 s16, 4
    s_cbranch_scc1 L_p_loader
    """)
    a("""
    s_lshr_b32 s36, s16, 1
    s_and_b32 s37, s16, 1
    v_lshlrev_b32 v1, 4, v0
    s_lshl_b32 s38, s36, 13
    v_add_u32 v1, s38, v1
    v_lshrrev_b32 v7, 5, v0       ; h
    v_bfe_u32 v6, v0, 2, 2        ; r = i>>2
    v_lshl_add_u32 v5, v7, 2, v6  ; row = 4h + r
    v_lshlrev_b32 v5, 8, v5       ; *256
    v_and_b32 v4, 1, v0           ; h' = c&1
    v_lshlrev_b32 v4, 2, v4       ; 4h'
    v_bfe_u32 v7, v0, 4, 1        ; G  (g>>1)
    v_or_b32 v4, v4, v7
    s_lshl_b32 s38, s37, 3
    v_or_b32 v4, s38, v4          ; u for b=0
    v_and_b32 v7, 1, v6
    v_lshlrev_b32 v7, 1, v7
    v_xor_b32 v4, v4, v7
    v_lshrrev_b32 v7, 1, v6
    v_lshlrev_b32 v7, 3, v7
    v_xor_b32 v4, v4, v7
    v_bfe_u32 v7, v0, 1, 1        ; g&1
    v_lshl_add_u32 v5, v7, 3, v5
    v_add_u32 v5, 16384, v5
    v_lshl_add_u32 v2, v4, 4, v5
    v_xor_b32 v4, 2, v4
    v_lshl_add_u32 v3, v4, 4, v5
    """)
    ACC = 72
    st = Stamper(a, 6, 1)
    st(0)
    for r in range(ACC, ACC + 64): a(f"v_mov_b32 v{r}, 0")
    F = [8, 40]
    def reads(fs, u):
        r = []
        for kk in range(2):
            ks = 2 * u + kk
            b = F[fs] + 16 * kk
            r.append(f"ds_read_b128 {vr(b,4)}, v1 offset:{ks*1024}")
            r.append(f"ds_read_b64_tr_b16 {vr(b+8,2)}, v2 offset:{ks*4096}")
            r.append(f"ds_read_b64_tr_b16 {vr(b+10,2)}, v2 offset:{ks*4096+2048}")
            r.append(f"ds_read_b64_tr_b16 {vr(b+12,2)}, v3 offset:{ks*4096}")
            r.append(f"ds_read_b64_tr_b16 {vr(b+14,2)}, v3 offset:{ks*4096+2048}")
            r.append(f"ds_read_b128 {vr(b+4,4)}, v1 offset:{4096+ks*1024}")
        return r
    def mfmas(fs):
        m = []
        for kk in range(2):
            b = F[fs] + 16 * kk
            for tt in range(2):
                for bb in range(2):
                    m.append(mfma(ACC + (tt * 2 + bb) * 16, b + 8 + 4 * bb, b + 4 * tt))
        return m
    a("s_mov_b32 s40, 0\ns_mov_b32 s49, 0x8000\ns_barrier")
    st(1)
    for r in reads(0, 0): a(r)
    a(".p2align 6\nL_p_loop:")
    for u in range(2):
        rd = reads(u ^ 1, u ^ 1); mm = mfmas(u)
        a("s_waitcnt lgkmcnt(0)")
        if u == 1:
            a("s_barrier")
            a(mm[0])
            a(f"""
            s_add_u32 s40, s40, 1
            s_and_b32 s41, s40, {PJ_NB-1}
            s_cmp_eq_u32 s41, 0
            s_cselect_b32 s43, {(-(PJ_NB-1)*32768) & 0xffffffff:#x}, s49
            v_add_u32 v1, s43, v1
            v_add_u32 v2, s43, v2
            v_add_u32 v3, s43, v3
            """)
        else:
            a(mm[0])
        a(rd[0]); a(rd[1]); a(rd[2])
        for i in range(1, 8):
            a(mm[i])
            if i < 4:
                a(rd[3 * i]); a(rd[3 * i + 1]); a(rd[3 * i + 2])
    a("s_cmp_lt_u32 s40, 16\ns_cbranch_scc1 L_p_loop")
    st(2)
    SC = OPT["p_sc"]
    a("""
    s_waitcnt lgkmcnt(0)
    s_lshl_b32 s46, s16, 13
    v_and_b32 v1, 31, v0          ; t
    v_lshrrev_b32 v2, 5, v0       ; h'
    v_lshlrev_b32 v2, 2, v2
    v_and_b32 v3, 7, v0
    v_xor_b32 v2, v2, v3          ; (4h') ^ (t&7)
    v_lshlrev_b32 v1, 7, v1
    v_add_u32 v1, s46, v1
    v_lshl_add_u32 v8, v2, 4, v1
    v_xor_b32 v9, 16, v8
    v_xor_b32 v10, 32, v8
    v_xor_b32 v11, 48, v8
    v_lshlrev_b32 v12, 4, v0
    v_add_u32 v12, s46, v12
    s_lshl_b32 s44, s33, 7
    s_lshl_b32 s45, s36, 6
    s_add_u32 s44, s44, s45
    v_lshrrev_b32 v1, 3, v0
    v_xor_b32 v2, v1, v3          ; unit
    v_add_u32 v1, s44, v1
    v_lshlrev_b32 v1, 12, v1
    v_lshl_add_u32 v1, v2, 4, v1
    s_lshl_b32 s44, s32, 11
    s_lshl_b32 s45, s34, 8
    s_add_u32 s44, s44, s45
    s_lshl_b32 s45, s37, 7
    s_add_u32 s44, s44, s45
    """)
    for tt in range(2):
        for bb in range(2):
            d = ACC + (tt * 2 + bb) * 16
            for r in range(8): a(f"v_cvt_pk_bf16_f32 v{d+r}, v{d+2*r}, v{d+2*r+1}")
            a(f"ds_write_b128 v{8+2*bb}, {vr(d,4)} offset:{tt*4096}")
            a(f"ds_write_b128 v{9+2*bb}, {vr(d+4,4)} offset:{tt*4096}")
        a("s_waitcnt lgkmcnt(0)")
        for i in range(4): a(f"ds_read_b128 {vr(16+16*tt+4*i,4)}, v12 offset:{tt*4096+i*1024}")
    for i in range(8):
        a(f"s_waitcnt lgkmcnt({max(0, 7-i) if i >= 4 else 4})")
        a(f"buffer_store_dwordx4 {vr(16+4*i,4)}, v1, s[8:11], s44 offen {SC}")
        a("s_add_u32 s44, s44, 0x8000")
    st(3)
    if STAMP: a("s_waitcnt vmcnt(0)")
    st(4)
    st.flush(1)
    a("s_endpgm")
    a("L_p_loader:")
    a(f"""
    s_sub_u32 s36, s16, 4
    s_lshl_b32 s37, s33, 2
    s_add_u32 s37, s37, s36
    s_lshl_b32 s37, s37, 16
    s_lshl_b32 s38, s32, 22
    s_add_u32 s37, s37, s38
    s_add_u32 s37, s37, {WS_O}
    v_lshlrev_b32 v1, 4, v0
    v_add_u32 v1, s37, v1         ; O voffset
    v_lshrrev_b32 v2, 4, v0       ; r
    v_and_b32 v3, 15, v0          ; p
    v_and_b32 v4, 1, v2
    v_lshlrev_b32 v4, 1, v4
    v_xor_b32 v3, v3, v4
    v_lshrrev_b32 v4, 1, v2
    v_lshlrev_b32 v4, 3, v4
    v_xor_b32 v3, v3, v4          ; u
    s_lshl_b32 s38, s36, 4
    v_add_u32 v2, s38, v2
    v_lshlrev_b32 v2, 11, v2      ; row*2048
    v_lshl_add_u32 v2, v3, 4, v2
    s_lshl_b32 s38, s34, 8
    v_add_u32 v2, s38, v2
    s_lshl_b32 s40, s36, 12       ; lw*4096
    """)
    for j in range(4): a(f"v_add_u32 v{8+j}, {j*4*2048 - j*1024}, v2")
    def ld(s):
        base = (s % PJ_NB) * 32768
        a(f"s_mov_b32 s42, {s*4096}\ns_mov_b32 s43, {s*64*2048}")
        a(f"s_add_u32 m0, s40, {base}\ns_nop 0")
        for j in range(4): a(f"buffer_load_dwordx4 v1, s[12:15], s42 offen offset:{j*1024} lds")
        a(f"s_add_u32 m0, s40, {base+16384}\ns_nop 0")
        for j in range(4): a(f"buffer_load_dwordx4 v{8+j}, s[4:7], s43 offen offset:{j*1024} lds")
    for s in range(OPT["p_pro"]): ld(s)
    issued = OPT["p_pro"]
    for s in range(16):
        a(f"s_waitcnt vmcnt({(issued - 1 - s) * 8})\ns_barrier")
        if issued < 16 and issued <= s + PJ_NB - 1:
            ld(issued); issued += 1
    a("L_p_end:\ns_endpgm")
    return kdesc(K, 136)

def main():
    global STAMP
    if "--stamp" in sys.argv:
        STAMP = True; sys.argv.remove("--stamp")
    for arg in list(sys.argv[1:]):
        if "=" in arg:
            k, v = arg.split("=", 1); OPT[k] = type(OPT[k])(v.replace("+", " ")); sys.argv.remove(arg)
    a = Asm()
    hdr = open("cdna_kernels/%s.s.ref" % NAME).read().split("\n")
    head = [l for l in hdr if l.startswith(";") and "@launch" not in l and "Override" not in l and "grid=ceil" not in l]
    txt = "\n".join(head) + "\n"
    txt += f"; @launch kernel=fused_kernel grid=(256,1,1) block=(512,1,1) lds={G2_LDS}\n"
    if not OPT["fuse"]: txt += f"; @launch kernel=proj_kernel grid=(256,1,1) block=(512,1,1) lds={PJ_LDS}\n"
    txt += '.amdgcn_target "amdgcn-amd-amdhsa--gfx950"\n.text\n'
    d = [gen_fused(a)] + ([] if OPT["fuse"] else [gen_proj(a)])
    a("L_code_end:")
    txt += a.text()
    txt += '.section .rodata,"a"\n' + "".join(d)
    out = sys.argv[1] if len(sys.argv) > 1 else OUT
    open(out, "w").write(txt)
    print("wrote", out, len(txt))

if __name__ == "__main__":
    main()
```

```python
import sys, math, struct

NAME = "concat_heads__sliding_block__mha_block__prompt"
OUT = "cdna_kernels/%s.s" % NAME

def f32(x): return struct.unpack("<I", struct.pack("<f", x))[0]

class Asm:
    def __init__(self): self.l = []
    def __call__(self, s):
        for line in s.strip("\n").split("\n"):
            line = line.strip()
            if not line: continue
            self.l.append(line if line.endswith(":") or line.startswith(".") else "    " + line)
    def text(self): return "\n".join(self.l) + "\n"

def vr(a, n): return "v[%d:%d]" % (a, a + n - 1)
def sr(a, n): return "s[%d:%d]" % (a, a + n - 1)

MB = 1 << 20
OPT = dict(q_sc="sc1", a_sc="sc1", p_sc="sc1", ws_off=0, q_lead=3, q_touch=0, p_pro=2, icp=1, h_ld="sc1", yprio=2, thr=9, xsleep=4, ysleep=32, nring=10, ykill=0, xdyn=0, wot=1, ydelay=20, xprio=3, pret=1, epub=1, roff=88, thi=24, fuse=1, pprio=0, pdelay=0, psleep=4, pdepth=3, wthr=6, vlow=1, mix=0, arot=0, ydyn=0, winit=8, pord=1, pmap=1)
WS_Q, WS_KV, WS_O, WS_SIZE = 0, 8 * MB, 24 * MB, 34 * MB
WS_GEN = 1 * MB
WS_FL = 0

def srd(a, s, lo, hi, size):
    if lo == "s28" and OPT["ws_off"]:
        a(f"s_add_u32 s28, s28, {OPT['ws_off']*MB:#x}\ns_addc_u32 s29, s29, 0")
    a(f"""
    s_mov_b32 s{s}, {lo}
    s_mov_b32 s{s+1}, {hi}
    s_mov_b32 s{s+2}, {size:#x}
    s_mov_b32 s{s+3}, 0x00020000
    """)

def kstart(a, name):
    a(f"""
    .globl {name}
    .p2align 8
    .type {name},@function
    {name}:
    """)

def kdesc(name, nfv, nsgpr=102):
    acc = (nfv + 3) // 4 * 4
    return f"""
.p2align 6
.amdhsa_kernel {name}
  .amdhsa_next_free_vgpr {nfv}
  .amdhsa_next_free_sgpr {nsgpr}
  .amdhsa_accum_offset {acc}
  .amdhsa_group_segment_fixed_size 0
  .amdhsa_kernarg_size 72
  .amdhsa_user_sgpr_count 2
  .amdhsa_user_sgpr_kernarg_segment_ptr 1
  .amdhsa_system_sgpr_workgroup_id_x 1
.end_amdhsa_kernel
"""

STAMP = False
class Stamper:
    def __init__(self, a, vreg, kidx): self.a, self.v, self.k = a, vreg, kidx
    def __call__(self, n):
        if not STAMP: return
        self.a(f"""
        s_memtime s[96:97]
        s_memrealtime s[98:99]
        s_waitcnt lgkmcnt(0)
        v_writelane_b32 v{self.v}, s96, {n}
        v_writelane_b32 v{self.v}, s98, {32+n}
        """)
    def dyn(self, sidx, mul, add):
        if not STAMP: return
        self.a(f"""
        s_memtime s[96:97]
        s_mul_i32 s98, {sidx}, {mul}
        s_add_u32 m0, s98, {add}
        s_waitcnt lgkmcnt(0)
        v_writelane_b32 v{self.v}, s96, m0
        """)
    def flush(self, tmp, lane="v0"):
        if not STAMP: return
        self.a(f"""
        s_lshl_b32 s96, s2, 3
        s_add_u32 s96, s96, s16
        s_lshl_b32 s96, s96, 8
        s_add_u32 s96, s96, {WS_SIZE - 2*MB + self.k * 512 * 1024}
        v_lshlrev_b32 v{tmp}, 2, {lane}
        buffer_store_dword v{self.v}, v{tmp}, s[12:15], s96 offen
        """)

def mfma(d, A, B, C=None):
    c = vr(d, 16) if C is None else (C if isinstance(C, str) else vr(C, 16))
    return f"v_mfma_f32_32x32x16_bf16 {vr(d,16)}, {vr(A,4)}, {vr(B,4)}, {c}"

G2_SLOT = 40960
G2_LDS = 163840
FLAGS = 159 * 1024
XSCR = 120 * 1024
R_OFF = 64.0
T_HI = 2.0 ** 48
SPIN_MAX = 1 << 18

def mfma16(d, A, B):
    return f"v_mfma_f32_16x16x32_bf16 {vr(d,4)}, {vr(A,4)}, {vr(B,4)}, {vr(d,4)}"

def upper_mask(r):
    m = 0
    for l in range(64):
        if r + 16 * (l >> 5) > (l & 31): m |= 1 << l
    return m

def gen_fused(a):
    K = "fused_kernel"
    kstart(a, K)
    NR = OPT["nring"]
    R_OFF = float(OPT["roff"]); T_HI = 2.0 ** OPT["thi"]
    VLANE, T0, T1, IDX, T2, VCNT = 1, 2, 3, 4, 5, 6
    AS = 8; S = [16, 32]
    OO = [48, 64, 80, 96]; NN = [112, 128, 144, 232]; QQ = [160, 168, 176, 184]; F0 = 192
    LL = [12, 248, 250, 252]
    VFL, VONE = 254, 255
    O, L, QF, KF, VA, VB, NM, MK = OO[2], 228, QQ[2], F0, F0 + 8, F0 + 12, NN[0], NN[1]
    VK, VKN = 208, 209
    DX, DW, DT = 232, 236, 242
    assert NR <= 10
    NINF = 0xff800000
    HL = OPT["h_ld"]; THR = OPT["thr"]; SC = OPT["q_sc"]; ASC = OPT["a_sc"]
    st = Stamper(a, 7, 0)
    a(f"""
    s_cmp_ge_u32 s2, 256
    s_cbranch_scc1 L_f_end
    s_load_dwordx4 s[20:23], s[0:1], 0
    s_load_dwordx2 s[24:25], s[0:1], 24
    s_load_dwordx2 s[26:27], s[0:1], 32
    s_load_dwordx2 s[28:29], s[0:1], 64
    s_load_dwordx2 s[18:19], s[0:1], 56
    v_lshrrev_b32 v1, 6, v0
    v_and_b32 v0, 63, v0
    s_and_b32 s30, s2, 7          ; xcd
    s_lshr_b32 s31, s2, 3         ; idx
    v_readfirstlane_b32 s16, v1
    s_and_b32 s33, s30, 1
    s_lshl_b32 s33, s33, 3
    s_and_b32 s34, s31, 7
    s_add_u32 s33, s33, s34       ; mt (0..15)
    s_lshr_b32 s34, s30, 1
    s_lshl_b32 s34, s34, 2
    s_lshr_b32 s35, s31, 3
    s_add_u32 s34, s34, s35       ; nt (0..15)
    s_and_b32 s59, s16, 3
    v_mov_b32 v{VONE}, 1
    s_cmp_lt_u32 s16, 4
    s_cbranch_scc1 L_x
    """)

    ool = []
    def flag_base(kind, spos):
        a(f"""
        s_lshl_b32 s49, s34, 2
        s_add_u32 s49, s49, s59
        s_lshl_b32 s49, s49, 11
        s_add_u32 s49, s49, {WS_FL + kind * 131072}
        s_lshl_b32 s32, {spos}, 7
        s_add_u32 s32, s32, s49
        """)
    def oflag_base(kind):
        a(f"""
        s_lshl_b32 s49, s33, 1
        s_add_u32 s49, s49, s36
        s_lshl_b32 s49, s49, 12
        s_add_u32 s49, s49, {WS_FL + kind * 131072}
        s_lshl_b32 s32, s34, 1
        s_add_u32 s32, s32, s37
        s_lshl_b32 s32, s32, 7
        s_add_u32 s32, s32, s49
        """)
    NONCE_LD = "s_load_dwordx4 s[68:71], s[18:19], 0"
    def get_nonce(tag):
        a(f"""
        s_mov_b32 s62, s68
        s_mov_b32 s63, s69
        s_cmp_lg_u32 s70, 0
        s_cbranch_scc0 L_non_{tag}
        L_nond_{tag}:
        """)
        def o():
            a(f"""
            L_non_{tag}:
            s_mov_b32 s100, {SPIN_MAX}
            L_nonl_{tag}:
            v_mov_b32 v{VCNT}, 0
            global_load_dwordx4 v[12:15], v{VCNT}, s[18:19] sc1
            s_waitcnt vmcnt(0)
            v_readfirstlane_b32 s62, v12
            v_readfirstlane_b32 s63, v13
            v_cmp_ne_u32 vcc, 0, v14
            s_cbranch_vccnz L_nond_{tag}
            s_sleep 8
            s_sub_u32 s100, s100, 1
            s_cbranch_scc0 L_nonl_{tag}
            s_branch L_nond_{tag}
            """)
        ool.append(o)
    def publish():
        a(f"""
        v_lshrrev_b32 v{VCNT}, 1, v{VLANE}
        v_mov_b32 v{T0}, s62
        v_mov_b32 v{T1}, s63
        s_mov_b64 exec, 0xffff
        buffer_store_dwordx2 {vr(T0,2)}, v{VCNT}, s[12:15], s32 offen sc1
        s_mov_b64 exec, -1
        """)
    def poll(tag, sneed, sleep, lanes=16):
        a(f"""
        s_mov_b32 s100, {SPIN_MAX}
        L_poll_{tag}:
        v_lshlrev_b32 v{T0}, 3, v{VLANE}
        {'s_mov_b64 exec, 0xffff' if lanes == 16 else 's_mov_b32 exec_hi, 0'}
        buffer_load_dwordx2 {vr(T0,2)}, v{T0}, s[12:15], s49 offen sc1
        s_waitcnt vmcnt(0)
        v_cmp_eq_u64 vcc, s[62:63], {vr(T0,2)}
        s_mov_b64 exec, -1
        s_nop 3
        s_or_b32 s56, s56, vcc_lo
        s_and_b32 s101, s56, {sneed}
        s_cmp_eq_u32 s101, {sneed}
        s_cbranch_scc1 L_polld_{tag}
        s_sleep {sleep}
        s_sub_u32 s100, s100, 1
        s_cbranch_scc0 L_poll_{tag}
        L_polld_{tag}:
        """)
    def attn_consts(masks):
        a(f"""
        s_mov_b32 s46, {f32(T_HI):#x}
        s_mov_b32 s47, {f32(R_OFF):#x}
        v_mov_b32 v{IDX}, 0xdddddddd
        v_and_b32 v{T0}, 7, v0
        v_mov_b32 v{T1}, 0x3f803f80
        v_cmp_eq_u32 vcc, 0, v{T0}
        v_mov_b32 v{T2}, {NINF:#x}
        s_nop 0
        v_cndmask_b32 v{AS}, 0, v{T1}, vcc
        v_cndmask_b32 v{AS+1}, 0, v{T1}, vcc
        v_cmp_eq_u32 vcc, 4, v{T0}
        s_nop 1
        v_cndmask_b32 v{AS+2}, 0, v{T1}, vcc
        v_cndmask_b32 v{AS+3}, 0, v{T1}, vcc
        """)
        if masks:
            for r in range(16):
                m = upper_mask(r)
                a(f"s_mov_b32 s{64+2*r}, {m & 0xffffffff:#x}\ns_mov_b32 s{65+2*r}, {m >> 32:#x}")
    def zero_acc():
        for r in range(16): a(f"v_mov_b32 v{O+r}, 0")
        for r in range(4): a(f"v_mov_b32 v{L+r}, 0")
    def arrive(n): return [f"ds_add_u32 v{VFL}, v{VONE}", f"s_add_u32 s48, s48, {n}"]
    RDCNT = f"ds_read_b32 v{VCNT}, v{VFL}"
    def spin_lds(tag, sleep=1):
        a(f"""
        s_mov_b32 s100, {SPIN_MAX * 16}
        L_spin_{tag}:
        ds_read_b32 v{VCNT}, v{VFL}
        s_waitcnt lgkmcnt(0)
        v_cmp_le_u32 vcc, s48, v{VCNT}
        s_cbranch_vccnz L_spind_{tag}
        s_sleep {sleep}
        s_sub_u32 s100, s100, 1
        s_cbranch_scc0 L_spin_{tag}
        L_spind_{tag}:
        """)
    def group_sync(tag, n, sleep=1):
        for op in arrive(n): a(op)
        spin_lds(tag, sleep)

    c = math.log2(math.e) / math.sqrt(32.0)
    def gemm_setup(slot0, part, spos):
        a(f"""
        s_lshr_b32 s36, s59, 1        ; wm
        s_and_b32 s37, s59, 1         ; wh
        v_and_b32 v6, 15, v0          ; t
        v_lshrrev_b32 v8, 4, v0       ; g
        v_bfe_u32 v5, v0, 1, 3        ; f = (t>>1)&7
        v_lshlrev_b32 v6, 7, v6       ; t*128
        s_lshl_b32 s38, s36, 13
        s_add_u32 s38, s38, {slot0}
        v_add_u32 v6, s38, v6         ; + wm*8192
        v_xor_b32 v1, v8, v5
        v_xor_b32 v2, 4, v1
        v_lshl_add_u32 v1, v1, 4, v6
        v_lshl_add_u32 v2, v2, 4, v6
        v_lshrrev_b32 v6, 5, v0       ; g>>1
        s_mov_b32 s39, 6144
        v_mul_lo_u32 v6, v6, s39
        v_and_b32 v8, 1, v8           ; g&1
        v_bfe_u32 v5, v0, 2, 2        ; r = i>>2
        v_lshl_add_u32 v5, v8, 3, v5  ; 8(g&1) + r
        v_lshl_add_u32 v6, v5, 7, v6
        v_and_b32 v5, 3, v0
        v_lshl_add_u32 v6, v5, 3, v6  ; + (i&3)*8
        v_add_u32 v6, {16384 + slot0}, v6
        v_bfe_u32 v5, v0, 3, 1        ; (r>>1)&1
        v_lshl_or_b32 v5, v8, 1, v5   ; swz
        s_lshl_b32 s38, s37, 1
        v_xor_b32 v5, s38, v5
        v_lshl_add_u32 v3, v5, 5, v6
        v_xor_b32 v5, 1, v5
        v_lshl_add_u32 v4, v5, 5, v6
        s_lshl_b32 s44, s34, 1
        s_add_u32 s44, s44, s37       ; head
        s_lshl_b32 s44, s44, 6
        s_lshl_b32 s45, {spos}, 2
        s_add_u32 s44, s44, s45
        s_lshl_b32 s45, s36, 1
        s_add_u32 s44, s44, s45
        s_lshl_b32 s65, s44, 12
        s_add_u32 s65, s65, {WS_KV + part*8*MB}
        s_mov_b32 s67, {f32(c):#x}
        v_and_b32 v5, 15, v0
        v_lshrrev_b32 v6, 4, v0
        v_lshlrev_b32 v5, 4, v5
        v_lshl_add_u32 v5, v6, 9, v5  ; g*512 + (l&15)*16
        s_mov_b32 s17, 0
        s_mov_b32 s48, 0
        """)
        for r in range(64, 160): a(f"v_mov_b32 v{r}, 0")
    XF = [8, 24]; WF = 40
    def acc(t, s):
        sec, cb = s >> 1, s & 1
        if sec < 2: return 64 + ((t * 2 + sec) * 2 + cb) * 4
        return 128 + (((t >> 1) * 2 + cb) * 2 + (t & 1)) * 4
    def rdx(buf, t, ks): return f"ds_read_b128 {vr(XF[buf]+4*t,4)}, v{1+ks} offset:{t*2048}"
    def rdw(s, half, ks):
        sec, cb = s >> 1, s & 1
        return f"ds_read_b64_tr_b16 {vr(WF+4*s+2*half,2)}, v{3+cb} offset:{ks*12288+sec*2048+half*512}"
    def relayout(qbase, kvbase, kvstep, qdst, nq_now):
        a(f"""
        s_waitcnt lgkmcnt(0)
        v_lshlrev_b32 v{VLANE}, 4, v0
        v_add_u32 v8, {qbase}, v5
        v_add_u32 v9, {kvbase}, v5
        v_and_b32 v10, 3, v0
        v_bfe_u32 v11, v0, 2, 2
        v_lshl_add_u32 v10, v11, 3, v10
        v_lshrrev_b32 v11, 4, v0
        v_lshlrev_b32 v10, 4, v10
        v_lshl_add_u32 v10, v11, 9, v10
        v_add_u32 v10, {kvbase}, v10
        v_add_u32 v11, {kvbase}, v{VLANE}
        """)
        for T in range(2):
            for tl in range(2):
                d = acc(2 * T + tl, 2)
                for r in range(4): a(f"v_cvt_pk_bf16_f32 v{d+r}, v{d+2*r}, v{d+2*r+1}")
                a(f"ds_write_b128 v10, {vr(d,4)} offset:{T*kvstep+tl*64}")
            for cb in range(2):
                d = acc(2 * T, 4 + cb)
                for r in range(4): a(f"v_cvt_pk_bf16_f32 v{d+r}, v{d+2*r}, v{d+2*r+1}")
                a(f"ds_write_b128 v9, {vr(d,4)} offset:{T*kvstep+2048+cb*256}")
            for k in range(4): a(f"ds_read_b128 {vr(F0+16*T+4*k,4)}, v11 offset:{T*kvstep+k*1024}")
        for t in range(4):
            d = acc(t, 0)
            for r in range(8): a(f"v_mul_f32 v{d+r}, s67, v{d+r}")
            for r in range(4): a(f"v_cvt_pk_bf16_f32 v{d+r}, v{d+2*r}, v{d+2*r+1}")
            a(f"ds_write_b128 v8, {vr(d,4)} offset:{(t>>1)*2048+(t&1)*256}")
            if t == 0:
                a("s_add_u32 s66, s65, 4096\ns_waitcnt lgkmcnt(1)")
                for T in range(2):
                    for k in range(4):
                        a(f"buffer_store_dwordx4 {vr(F0+16*T+4*k,4)}, v{VLANE}, s[12:15], s{65+T} offen offset:{k*1024} {SC}")
        a(f"v_add_u32 v11, {qbase}, v{VLANE}")
        for k in range(2 * nq_now): a(f"ds_read_b128 {vr(qdst+4*k,4)}, v11 offset:{k*1024}")
    BAR = 24 + 8
    RS = {}
    def put(i, op): RS.setdefault(i, []).append(op)
    put(0, ("w", 5, 0, rdw(5, 1, 0)))
    for s_ in range(6):
        put(4 * s_ + 3, ("w", s_, 1, rdw(s_, 0, 1))); put(4 * s_ + 4, ("w", s_, 1, rdw(s_, 1, 1)))
    for t in range(4): put(1 + 4 * t, ("x", t, 1, rdx(1, t, 1)))
    order = [("w", 0, 0, rdw(0, 0, 0)), ("w", 0, 0, rdw(0, 1, 0))] + [("x", t, 0, rdx(0, t, 0)) for t in range(4)]
    for s_ in range(1, 6): order += [("w", s_, 0, rdw(s_, 0, 0)), ("w", s_, 0, rdw(s_, 1, 0))]
    pos = BAR + 1
    for op in order[:-1]:
        if op[0] == "w": pos = max(pos, 24 + 4 * op[1] + 3)
        assert pos <= 47
        put(pos, op); pos += 1
    def steady(): return [op[:3] for op in order[:-1]][3:]
    def first_frags():
        for t in range(4): a(rdx(0, t, 0))
        for s in range(6):
            a(rdw(s, 0, 0)); a(rdw(s, 1, 0))
        a("s_waitcnt lgkmcnt(0)")
    VADV = ["v_add_u32 v3, s3, v3", "v_add_u32 v1, s3, v1", "v_add_u32 v4, s3, v4", "v_add_u32 v2, s3, v2"]
    def stage(MISC):
        LQ = steady()
        for i in range(48):
            ks, s_, t = i // 24, (i % 24) >> 2, i & 3
            x, w = XF[ks] + 4 * t, WF + 4 * s_
            a(mfma16(acc(t, s_), w, x) if s_ < 4 else mfma16(acc(t, s_), x, w))
            n = (i + 1) % 48
            need = [("w", (n % 24) >> 2, n // 24), ("x", n & 3, n // 24)]
            idx = [j for j, e in enumerate(LQ) if e in need]
            if idx:
                a(f"s_waitcnt lgkmcnt({len(LQ) - 1 - max(idx)})")
                del LQ[:max(idx) + 1]
            for op in RS.get(i, []):
                a(op[3]); LQ.append(op[:3])
            for op in MISC.get(i, []):
                a(op)
                if "lgkmcnt(0)" in op: LQ.clear()
                elif op.startswith("ds_"): LQ.append(("f", 0, 0))
        assert LQ == steady()

    LEAD = OPT["q_lead"]
    def loader_setup():
        a(f"""
        v_lshrrev_b32 v1, 3, v0       ; l>>3
        v_and_b32 v2, 7, v0           ; l&7
        v_lshrrev_b32 v3, 4, v0       ; l>>4
        s_lshl_b32 s37, s33, 7
        s_lshl_b32 s38, s59, 5
        s_add_u32 s37, s37, s38
        v_add_u32 v4, s37, v1
        v_lshlrev_b32 v4, 11, v4      ; row*2048
        v_xor_b32 v5, v2, v3
        v_xor_b32 v6, 4, v5
        v_lshl_add_u32 v{DX}, v5, 4, v4
        v_lshl_add_u32 v6, v6, 4, v4
        """)
        for n in range(1, 4):
            a(f"v_add_u32 v{DX+n}, {n*16384 - n*1024}, v{6 if n & 1 else DX}")
        a("""
        s_lshl_b32 s38, s59, 4
        v_add_u32 v4, s38, v1
        s_mov_b32 s39, 6144
        v_mul_lo_u32 v4, v4, s39
        v_and_b32 v3, 1, v3
        v_lshlrev_b32 v3, 1, v3
        v_xor_b32 v5, v2, v3          ; jj = 0
        v_xor_b32 v6, 4, v5           ; jj = 1
        s_lshl_b32 s38, s34, 7        ; nt*128
        v_add_u32 v4, s38, v4
        v_lshl_add_u32 v5, v5, 4, v4
        v_lshl_add_u32 v6, v6, 4, v4
        """)
        for sec in range(3):
            for jj in range(2):
                p = sec * 2 + jj
                a(f"v_add_u32 v{DW+p}, {sec*2048 + jj*8*6144 - (p % 3)*1024}, v{5+jj}")
        a("""
        s_lshl_b32 s40, s59, 12
        s_mul_i32 s41, s59, 6144
        s_add_u32 s41, s41, 16384     ; W lds
        s_add_u32 s58, s34, s33
        s_and_b32 s58, s58, 3         ; class
        """)
        LEAD = OPT["q_lead"]
        def korder(c_, first):
            pref = ([(c_ + i) & 3 for i in range(4)] + list(range(4, 16))) if first else list(range(16))
            seq = []
            for p in range(16):
                if (p >= 1 or not first) and (p & 3) == c_ and p + LEAD <= 15 and (p + LEAD) not in seq: k = p + LEAD
                else: k = next(x for x in pref if x not in seq)
                seq.append(k)
            assert sorted(seq) == list(range(16))
            return seq
        tabs = []
        for c_ in range(4):
            seq = korder(c_, True) + korder(c_, not OPT["q_touch"])
            tabs.append([sum(seq[8 * w + i] << (4 * i) for i in range(8)) for w in range(4)])
        for w in range(4): a(f"s_mov_b32 s{60+w}, {tabs[0][w]:#x}")
        for c_ in range(1, 4):
            a(f"s_cmp_eq_u32 s58, {c_}")
            for w in range(4): a(f"s_cselect_b32 s{60+w}, {tabs[c_][w]:#x}, s{60+w}")

    loader_setup()
    if OPT["arot"]:
        a("""
        s_and_b32 s50, s34, 3
        s_lshl_b32 s50, s50, 1
        s_add_u32 s50, s50, s33
        s_and_b32 s50, s50, 7
        s_lshl_b32 s50, s50, 2
        s_mov_b32 s62, 0x76543210
        s_mov_b32 s63, 0x76543210
        s_lshr_b64 s[62:63], s[62:63], s50
        s_or_b32 s63, s62, 0x88888888
        """)
    a("s_waitcnt lgkmcnt(0)")
    srd(a, 4, "s24", "s25", 2048 * 1024 * 2)
    srd(a, 8, "s26", "s27", 1024 * 3072 * 2)
    DMA = [f"buffer_load_dwordx4 v{DX+n}, s[4:7], s42 offen offset:{n*1024} lds" for n in range(4)] + \
          [f"buffer_load_dwordx4 v{DW+p}, s[8:11], s43 offen offset:{(p%3)*1024} lds" for p in range(6)]
    DORD = [0, 4, 1, 5, 6, 2, 7, 8, 3, 9] if OPT["mix"] else list(range(10))
    def dgrp(i): return 0 if i < 4 else (1 if i < 7 else 2)
    def ld(s, count=10):
        base = (s % 3) * G2_SLOT
        if s == 16:
            a("s_mov_b32 s4, s20\ns_mov_b32 s5, s21\ns_mov_b32 s8, s22\ns_mov_b32 s9, s23")
        a(f"""
        s_bfe_u32 s44, s{60 + s // 8}, {(4 << 16) | (4 * (s % 8)):#x}
        s_add_u32 m0, s40, {base}
        s_lshl_b32 s42, s44, 7
        s_mul_i32 s43, s44, {64*6144}
        """)
        cur = 0
        for i in DORD[:count]:
            g = dgrp(i)
            if g != cur:
                a(f"s_add_u32 m0, {'s40' if g == 0 else 's41'}, {base + (3072 if g == 2 else 0)}\ns_nop 0"); cur = g
            a(DMA[i])
    srd(a, 12, "s28", "s29", WS_SIZE)
    ld(0)
    TCH = OPT["q_touch"]
    if TCH:
        a(f"""
        v_mul_lo_u32 v{DT}, v0, s39
        s_lshl_b32 s50, s59, 11
        s_add_u32 s50, s50, s38
        v_add_u32 v{DT}, s50, v{DT}
        s_lshl_b32 s51, s33, 7
        v_add_u32 v{DT+1}, s51, v0
        v_lshlrev_b32 v{DT+1}, 11, v{DT+1}
        s_cmp_eq_u32 s59, 3
        s_cselect_b32 s52, s20, s22
        s_cselect_b32 s53, s21, s23
        s_cselect_b32 s54, s6, s10
        s_mov_b32 s55, 0x00020000
        s_mov_b32 s51, {64*6144}
        s_cselect_b32 s51, 128, s51
        s_cselect_b32 s56, {64*2048}, 0
        s_cselect_b64 vcc, -1, 0
        v_cndmask_b32 v{DT}, v{DT}, v{DT+1}, vcc
        """)
    gemm_setup(G2_SLOT, 0, "s33")
    a(f"v_lshlrev_b32 v{VFL}, 2, v0\nv_add_u32 v{VFL}, {FLAGS + 512}, v{VFL}")
    ld(1)
    q = [0] * 10 + [1] * 10
    VE, VEO = 248, DT + 3
    for s in range(17):
        last = max(i for i, x in enumerate(q) if x == s)
        a(f"s_waitcnt vmcnt({len(q) - 1 - last})")
        a("s_barrier")
        if STAMP: a(f"s_memtime s[96:97]\ns_waitcnt lgkmcnt(0)\nv_writelane_b32 v7, s96, {8+s}")
        q = q[last + 1:]
        p = s + 2
        if s == 12: a(NONCE_LD)
        if TCH and 16 - LEAD <= p < 16:
            a(f"""
            s_cmp_lg_u32 s58, {p & 3}
            s_cbranch_scc1 L_q_nt{p}
            s_mul_i32 s50, s51, {p + LEAD - 16}
            buffer_load_dword v{DT+2}, v{DT}, s[52:55], s50 offen
            s_add_u32 s50, s50, s56
            buffer_load_dword v{DT+2}, v{DT}, s[52:55], s50 offen
            L_q_nt{p}:
            """)
        if s == 16:
            st(2)
            if OPT["ykill"]: a("s_endpgm")
            for t in range(4): a(rdx(0, t, 0))
            for s_ in range(6):
                a(rdw(s_, 0, 0)); a(rdw(s_, 1, 0))
        ld(p, 3 if p == 18 else 10); q += [p] * 10
    a(f"""
    s_setprio {OPT['yprio']}
    s_lshr_b64 s[62:63], s[62:63], 12
    s_mov_b32 s31, {G2_SLOT}
    s_mov_b32 s45, 1
    s_mov_b32 s57, {G2_SLOT}
    s_mov_b32 s50, s41
    s_waitcnt lgkmcnt(0)
    """)
    ROT = [["s_add_u32 s17, s17, 1", "s_add_u32 s45, s45, 1"],
           ["s_cmp_eq_u32 s45, 3", f"s_cselect_b32 s3, {(-2*G2_SLOT) & 0xffffffff:#x}, s31"],
           ["s_cselect_b32 s45, 0, s45", VADV[0]], VADV[1:3], VADV[3:]]
    def ymisc(tag, first, second, vm, endcmp):
        M = {}
        def add(i, ops): M.setdefault(i, []).extend(ops)
        lo = ["s_setprio 0"] if OPT["vlow"] else ["s_nop 0"]
        hi = [f"s_setprio {OPT['yprio']}"] if OPT["vlow"] else []
        if second:
            for i, pos in zip(range(3, 10), (2, 6, 10, 14, 17, 21, 24)):
                mm = {4: ["s_mov_b32 m0, s50"], 7: ["s_add_u32 m0, s50, 3072"]}.get(i, [])
                add(pos, mm + lo + [DMA[i]] + hi)
        for i, ops in enumerate(ROT): add(25 + i, ops)
        add(29, [f"s_waitcnt vmcnt({vm}) lgkmcnt(0)"] + arrive(4))
        if STAMP and OPT["ydyn"]:
            add(29, ["s_memtime s[96:97]", "s_add_u32 m0, s17, 7", "s_waitcnt lgkmcnt(0)", "v_writelane_b32 v7, s96, m0"])
        add(30, [RDCNT])
        add(32, ["s_waitcnt lgkmcnt(0)", f"v_cmp_gt_u32 vcc, s48, v{VCNT}", f"s_cbranch_vccnz L_ys_{tag}", f"L_ysd_{tag}:"])
        def o(tag=tag):
            a(f"L_ys_{tag}:"); spin_lds("y" + tag); a(f"s_branch L_ysd_{tag}")
        ool.append(o)
        if first:
            add(30, ["s_and_b32 s44, s62, 15", "s_lshr_b64 s[62:63], s[62:63], 4", "s_add_u32 s50, s41, s57"])
            add(31, ["s_lshl_b32 s42, s44, 7", f"s_mul_i32 s43, s44, {64*6144}", "s_add_u32 m0, s40, s57"])
            for i, pos in zip(range(3), (34, 39, 44)): add(pos, lo + [DMA[i]] + hi)
            add(36, ["s_add_u32 s57, s57, s3"])
        if endcmp: add(46, [endcmp])
        return M
    assert not OPT["mix"]
    a(".p2align 6\nL_y_loop:")
    stage(ymisc("a", True, True, 10, "s_cmp_lt_u32 s17, 13"))
    a("s_cbranch_scc1 L_y_loop")
    stage(ymisc("c", False, True, 10, None))
    a(".p2align 6\nL_y_loop2:")
    stage(ymisc("b", False, False, 0, "s_cmp_lt_u32 s17, 16"))
    a("s_cbranch_scc1 L_y_loop2")
    st(3)
    a(f"""
    s_mul_i32 s38, s37, 49152
    s_lshl_b32 s39, s36, 13
    s_add_u32 s39, s39, s38       ; + wm*8192
    s_add_u32 s40, s39, 32768
    s_lshl_b32 s41, s59, 12
    s_add_u32 s41, s41, {96*1024}
    s_load_dwordx2 s[20:21], s[0:1], 16
    s_load_dwordx2 s[22:23], s[0:1], 40
    """)
    relayout("s41", "s40", 4096, QQ[0], 2)
    a("s_mov_b32 s42, s65")
    get_nonce("y")
    flag_base(0, "s33")
    attn_consts(True)
    a(f"""
    s_lshl_b32 s50, 1, s33
    s_lshr_b32 s51, s50, 1
    s_lshr_b32 s50, s50, 2
    s_or_b32 s51, s51, s50
    s_mov_b32 s56, 0
    s_waitcnt vmcnt(0)
    """)
    publish()
    st(4)
    if OPT["pmap"]:
        a("""
        s_bfe_u32 s30, s2, 0x20001
        s_lshl_b32 s30, s30, 2
        s_bfe_u32 s50, s2, 0x20003
        s_add_u32 s30, s30, s50
        s_and_b32 s31, s2, 1
        s_lshl_b32 s31, s31, 3
        s_lshr_b32 s50, s2, 5
        s_add_u32 s31, s31, s50
        """)
    else:
        a("s_mov_b32 s30, s33\ns_mov_b32 s31, s34")
    assert OPT["pmap"]
    VWT = 224
    a(f"""
    s_and_b32 s44, s30, 3
    s_lshl_b32 s44, s44, 2
    s_add_u32 s44, s44, s59
    s_lshl_b32 s44, s44, 17
    s_lshl_b32 s50, s31, 7
    s_add_u32 s44, s44, s50
    v_lshlrev_b32 v{VWT}, 11, v0
    s_mov_b32 s4, s20
    s_mov_b32 s5, s21
    s_mov_b32 s6, {1024*1024*2:#x}
    s_mov_b32 s7, 0x00020000
    """)
    if OPT["vlow"]: a("s_setprio 0")
    if OPT["ydelay"]: a(f"s_sleep {OPT['ydelay']}")
    poll("a", "s51", OPT["ysleep"])
    st(5)
    for g in (1, 2):
        a(f"s_cmp_lt_u32 s33, {g}\ns_cbranch_scc1 L_y_nowin")
        for T in range(2):
            a(f"s_add_u32 m0, s39, {(8 - 4*g + T) * 4096}\ns_sub_u32 s50, s42, {g*16384 - T*4096}")
            for k in range(4): a(f"buffer_load_dwordx4 v{VLANE}, s[12:15], s50 offen offset:{k*1024} {HL} lds")
    a(f"""
    L_y_nowin:
    s_setprio {OPT['yprio']}
    s_lshl_b32 s58, s33, 2
    s_lshl_b32 s50, s36, 1
    s_add_u32 s58, s58, s50
    s_lshl_b32 s41, s58, 5
    s_lshl_b32 s50, s34, 1
    s_add_u32 s41, s41, s50
    s_add_u32 s41, s41, s37
    s_lshl_b32 s41, s41, 11
    s_add_u32 s41, s41, {WS_O}    ; O offset
    s_mov_b32 s43, 0
    s_waitcnt vmcnt(0) lgkmcnt(0)
    """)
    for r in range(8): a(f"v_mov_b32 v{QF+r}, v{QQ[0]+r}")
    group_sync("y3", 4, 4)
    a(f"s_setprio {OPT['yprio']}")
    st(6)

    def sm32(d, A, B): return f"v_smfmac_f32_32x32x32_bf16 {vr(d,16)}, {vr(A,4)}, {vr(B,8)}, v{IDX}"
    def sm16(d, A, B): return f"v_smfmac_f32_16x16x64_bf16 {vr(d,4)}, {vr(A,4)}, {vr(B,8)}, v{IDX}"
    def rowmax_negm(s, nm):
        a(f"v_max3_f32 v{T0}, v{s}, v{s+1}, v{s+2}")
        for r in range(3, 15, 2): a(f"v_max3_f32 v{T0}, v{T0}, v{s+r}, v{s+r+1}")
        a(f"""
        v_max_f32 v{T0}, v{T0}, v{s+15}
        v_mov_b32 v{T1}, v{T0}
        s_nop 1
        v_permlane32_swap_b32 v{T0}, v{T1}
        s_nop 1
        v_max_f32 v{T0}, v{T0}, v{T1}
        v_add_f32 v{T0}, s47, v{T0}
        v_sub_f32 v{nm}, 0, v{T0}
        """)
        for r in range(1, 16): a(f"v_mov_b32 v{nm+r}, v{nm}")
    def normalise_store(o, l, pk, ooff, tag, slow_args):
        a(f"v_mul_f32 v{T0}, 0, v{l}")
        for r in range(16): a(f"v_fma_f32 v{T0}, v{o+r}, 0, v{T0}")
        a(f"""
        v_rcp_f32 v{T1}, v{l}
        v_cmp_u_f32 vcc, v{T0}, v{T0}
        s_nop 1
        s_cbranch_vccz L_ok_{tag}
        {slow_args}
        s_call_b64 s[52:53], L_slow
        """)
        if o != O:
            for r in range(16): a(f"v_mov_b32 v{o+r}, v{O+r}")
        a(f"v_rcp_f32 v{T1}, v{L}\ns_nop 0\nL_ok_{tag}:")
        for r in range(16): a(f"v_mul_f32 v{o+r}, v{T1}, v{o+r}")
        for r in range(8): a(f"v_cvt_pk_bf16_f32 v{pk+r}, v{o+2*r}, v{o+2*r+1}")
        a(f"""
        buffer_store_dwordx4 {vr(pk,4)}, v{VLANE}, s[12:15], {ooff} offen {ASC}
        buffer_store_dwordx4 {vr(pk+4,4)}, v{VLANE}, s[12:15], {ooff} offen offset:1024 {ASC}
        """)

    rescue_sites = []
    def tile_iter(i, q, rdVb, rdK, rdVa, first=False, cblk=NM, pre_qk=None, do_qk=True, chk=None):
        s, sp = S[i & 1], S[(i + 1) & 1]
        e = [f"v_exp_f32 v{s+r}, v{s+r}" for r in range(16)]
        a(e[0]); a(e[1])
        if not first: a(sm32(O, VB, sp + 8))
        a(rdVb)
        a(e[2]); a(e[3]); a(e[4])
        if not first: a(sm16(L, AS, sp + 8))
        a("s_waitcnt lgkmcnt(3)")
        if pre_qk: pre_qk()
        a(e[5])
        if do_qk: a(mfma(sp, KF, q, cblk))
        a("s_waitcnt lgkmcnt(2)")
        a(rdK[0])
        a(e[6]); a(e[7]); a(e[8])
        if do_qk: a(mfma(sp, KF + 4, q + 4))
        a("s_waitcnt lgkmcnt(2)")
        a(rdK[1])
        a(e[9]); a(e[10]); a(e[11])
        a(sm32(O, VA, s))
        a(rdVa)
        a(e[12]); a(e[13])
        if chk: a(f"v_cmp_lt_f32 vcc, s46, v{L}")
        a(e[14])
        a(sm16(L, AS, s))
        a("s_waitcnt lgkmcnt(3)")
        if chk:
            a(f"s_cbranch_vccnz L_resc_{chk}")
            a(f"L_back_{chk}:")
            rescue_sites.append((i & 1, chk))
        a(e[15])
    a("L_ya_unit:")
    zero_acc()
    a(f"""
    v_add_u32 v{VK}, s39, v{VLANE}
    s_add_u32 s45, s58, 1
    s_cmp_lt_u32 s58, 8
    s_cselect_b32 s45, s45, 99
    s_cmp_eq_u32 s45, 1
    s_cselect_b32 s50, 4096, 0
    v_add_u32 v{VKN}, s50, v{VK}
    """)
    J = [7, 8, 6, 5, 4, 3, 2, 1, 0]
    a(f"""
    ds_read_b128 {vr(KF,4)}, v{VKN} offset:{J[0]*4096}
    ds_read_b128 {vr(KF+4,4)}, v{VKN} offset:{J[0]*4096+1024}
    s_waitcnt lgkmcnt(0)
    {mfma(S[0], KF, QF, "0")}
    {mfma(S[0], KF+4, QF+4)}
    ds_read_b128 {vr(KF,4)}, v{VK} offset:{J[1]*4096}
    ds_read_b128 {vr(KF+4,4)}, v{VK} offset:{J[1]*4096+1024}
    ds_read_b128 {vr(VA,4)}, v{VKN} offset:{J[0]*4096+2048}
    s_nop 12
    s_cmp_lg_u32 s45, 1
    s_cbranch_scc1 L_a_nofix0
    """)
    for r in range(16): a(f"v_cndmask_b32 v{S[0]+r}, v{S[0]+r}, v{T2}, {sr(64+2*r,2)}")
    a("L_a_nofix0:")
    rowmax_negm(S[0], NM)
    for r in range(16): a(f"v_add_f32 v{S[0]+r}, v{NM}, v{S[0]+r}")
    inval_sites = []
    for i in range(9):
        def rda(reg, t, sub):
            t = min(t, 8)
            return f"ds_read_b128 {vr(reg,4)}, v{VKN if t == 0 else VK} offset:{J[t]*4096+sub*1024}"
        def pre(i=i):
            if OPT["wot"] and i % 2 == 1:
                a(f"s_cmp_eq_u32 s59, {i >> 1}\ns_cbranch_scc1 L_a_wt{i}\nL_a_wtd{i}:")
                ool.append(lambda i=i: a(f"L_a_wt{i}:\nbuffer_load_dword v{VWT+1}, v{VWT}, s[4:7], s44 offen\ns_branch L_a_wtd{i}"))
            if i + 1 <= 8:
                a(f"s_cmp_eq_u32 s45, {i+1}\ns_cbranch_scc1 L_a_inv{i}\nL_a_val{i}:")
                inval_sites.append(i)
            if i == 0:
                for r in range(16): a(f"v_cndmask_b32 v{MK+r}, v{NM+r}, v{T2}, {sr(64+2*r,2)}")
                a("s_nop 0")
            if i == 7:
                for r in range(16): a(f"v_cndmask_b32 v{MK+r}, v{T2}, v{NM+r}, {sr(64+2*r,2)}")
                a("s_nop 0")
        tile_iter(i, QF, rda(VB, i, 3), [rda(KF, i + 2, 0), rda(KF + 4, i + 2, 1)], rda(VA, i + 1, 2), first=(i == 0),
                  cblk=(MK if i in (0, 7) else NM), pre_qk=pre, do_qk=(i < 8), chk=(f"a{i}" if i in (2, 5) else None))
    a(f"""
    s_waitcnt lgkmcnt(0)
    s_nop 1
    {sm32(O, VB, S[0] + 8)}
    {sm16(L, AS, S[0] + 8)}
    s_nop 12
    """)
    normalise_store(O, L, OO[0], "s41", "a", f"""
    s_min_u32 s55, s45, 9
    s_sub_u32 s54, s55, 1
    s_lshl_b32 s54, s54, 12
    s_sub_u32 s54, s42, s54
    s_cmp_eq_u32 s55, 9
    s_cselect_b32 s57, 1, 2""")
    for r in range(8): a(f"v_mov_b32 v{QF+r}, v{QQ[1]+r}")
    a(f"""
    s_mov_b32 s4, s22
    s_mov_b32 s5, s23
    s_add_u32 s39, s39, 4096
    s_add_u32 s42, s42, 4096
    s_add_u32 s41, s41, {32*2048}
    s_add_u32 s58, s58, 1
    s_add_u32 s43, s43, 1
    s_cmp_lt_u32 s43, 2
    s_cbranch_scc1 L_ya_unit
    """)
    st(7)
    if OPT["fuse"]:
        PW = [12, 13, 14, 15]
        PD, PS, PE = 10, 11, 16
        ACC, WFr, OFr = 32, 64, 96
        a(f"""
        s_load_dwordx2 s[24:25], s[0:1], 48
        v_lshrrev_b32 v16, 5, v0          ; h
        v_bfe_u32 v17, v0, 2, 2           ; r = i>>2
        v_lshl_add_u32 v18, v16, 2, v17   ; row = 4h + r
        v_lshlrev_b32 v18, 7, v18
        v_and_b32 v19, 1, v0              ; h'
        v_lshlrev_b32 v19, 2, v19
        v_bfe_u32 v16, v0, 4, 1           ; g>>1
        v_or_b32 v19, v19, v16
        v_and_b32 v16, 2, v17
        v_xor_b32 v19, v19, v16
        v_bfe_u32 v16, v0, 1, 1           ; g&1
        v_lshl_add_u32 v18, v16, 3, v18
        v_lshl_add_u32 v{PW[0]}, v19, 4, v18
        v_xor_b32 v{PW[1]}, 32, v{PW[0]}
        v_add_u32 v{PW[2]}, 0x10000, v{PW[0]}
        v_add_u32 v{PW[3]}, 0x10000, v{PW[1]}
        v_lshrrev_b32 v16, 3, v0
        v_and_b32 v17, 7, v0
        v_bfe_u32 v18, v0, 4, 1
        v_lshlrev_b32 v18, 1, v18
        v_xor_b32 v18, v17, v18
        s_lshl_b32 s50, s59, 4
        v_add_u32 v19, s50, v16
        v_lshlrev_b32 v19, 11, v19
        v_lshl_add_u32 v{PD}, v18, 4, v19
        s_lshl_b32 s50, s31, 7
        v_add_u32 v{PD}, s50, v{PD}
        v_add_u32 v9, {8*2048 - 1024}, v{PD}
        v_xor_b32 v17, v16, v17
        s_lshl_b32 s50, s30, 7
        s_lshl_b32 s51, s59, 5
        s_add_u32 s50, s50, s51
        v_add_u32 v16, s50, v16
        v_lshlrev_b32 v16, 12, v16
        v_lshl_add_u32 v{PS}, v17, 4, v16
        s_lshl_b32 s58, s31, 7
        s_and_b32 s38, s31, {7 if OPT['pmap'] else 3}
        s_lshl_b32 s39, s30, 2
        s_add_u32 s39, s39, s59
        s_lshl_b32 s39, s39, 16
        s_add_u32 s39, s39, {WS_O}
        s_lshl_b32 s40, s59, 11
        s_mov_b32 s43, 0
        s_mov_b32 s4, s20
        s_mov_b32 s5, s21
        s_mov_b32 s6, {1024*1024*2:#x}
        s_mov_b32 s7, 0x00020000
        """)
        oflag_base(2)
        a("s_waitcnt vmcnt(0) lgkmcnt(0)")
        srd(a, 8, "s24", "s25", 2048 * 2048 * 2)
        publish()
        a(f"""
        s_lshl_b32 s49, s30, 1
        s_add_u32 s49, s49, s36
        s_lshl_b32 s49, s49, 12
        s_add_u32 s49, s49, {WS_FL + 2 * 131072}
        """)
        srd(a, 52, "s22", "s23", 1024 * 1024 * 2)
        NCL = 8 if OPT["pmap"] else 4
        def pseq(c_):
            if not OPT["pord"]: return [(16 // NCL * c_ + i) & 15 for i in range(16)]
            f = [0, 1, 2, 4, 5, 6, 8, 9, 10, 12, 13, 14]
            t = [7, 15, 3, 11]
            return [f[(12 * c_ // NCL + i) % 12] for i in range(12)] + ([t[c_ & 1], t[(c_ & 1) ^ 1], t[2 + (c_ & 1)], t[3 - (c_ & 1)]])
        pt = [[sum(pseq(c_)[8 * w + i] << (4 * i) for i in range(8)) for w in range(2)] for c_ in range(NCL)]
        for w in range(2): a(f"s_mov_b32 s{60+w}, {pt[0][w]:#x}")
        for c_ in range(1, NCL):
            a(f"s_cmp_eq_u32 s38, {c_}")
            for w in range(2): a(f"s_cselect_b32 s{60+w}, {pt[c_][w]:#x}, s{60+w}")
        def kofp(sd, g): return f"s_bfe_u32 {sd}, s{60 + ((g & 15) >> 3)}, {(4 << 16) | (4 * (g & 7)):#x}"
        NSL = 13
        a(f"""
        s_lshl_b32 s50, s59, 12
        s_add_u32 s50, s50, {NSL*8192}
        v_and_b32 v{PE}, 31, v0
        v_lshrrev_b32 v{PE+1}, 5, v0
        v_lshlrev_b32 v{PE+1}, 2, v{PE+1}
        v_and_b32 v{PE+2}, 7, v0
        v_xor_b32 v{PE+1}, v{PE+1}, v{PE+2}
        v_lshlrev_b32 v{PE}, 7, v{PE}
        v_add_u32 v{PE}, s50, v{PE}
        v_lshl_add_u32 v{PE}, v{PE+1}, 4, v{PE}
        v_xor_b32 v{PE+1}, 16, v{PE}
        v_xor_b32 v{PE+2}, 32, v{PE}
        v_xor_b32 v{PE+3}, 48, v{PE}
        v_add_u32 v{PE+4}, s50, v{VLANE}
        v_subrev_u32 v{PE+5}, 512, v{VFL}
        """)
        group_sync("p0", 4, 2)
        PQ = []
        PR = OPT["pprio"]
        def vm(op):
            if OPT["vlow"] and PR: a(f"s_setprio 0\n{op}\ns_setprio {PR}")
            else: a(op)
        def wdma(g):
            sd_ = "s[4:7]" if g < 16 else "s[52:55]"
            a(f"""
            {kofp("s44", g)}
            s_add_u32 m0, s40, {(g % NSL) * 8192}
            s_lshl_b32 s44, s44, 17
            """)
            vm(f"buffer_load_dwordx4 v{PD}, {sd_}, s44 offen lds\nbuffer_load_dwordx4 v9, {sd_}, s44 offen offset:1024 lds")
            PQ.extend([("w", g)] * 2)
        def oload(g):
            a(f"""
            {kofp("s50", g)}
            s_lshl_b32 s51, s50, 1
            s_lshl_b32 s51, 3, s51
            s_and_b32 s101, s56, s51
            s_cmp_eq_u32 s101, s51
            s_cbranch_scc0 L_ypw_{g}
            L_ypwd_{g}:
            s_lshl_b32 s50, s50, 12
            s_add_u32 s50, s50, s39
            """)
            ool.append(lambda g=g: a(f"L_ypw_{g}:\ns_call_b64 s[44:45], L_yp_poll\ns_branch L_ypwd_{g}"))
            return [f"buffer_load_dwordx4 {vr(OFr + 16*(g%8) + 4*k, 4)}, v{VLANE}, s[12:15], s50 offen offset:{k*1024} {HL}" for k in range(4)]
        ool.append(lambda: (a("L_yp_poll:"), poll("pp", "s51", OPT["psleep"], lanes=32), a("s_setpc_b64 s[44:45]")))
        cert = dict(landed=-1, free=-1, wnext=0, pend=None)
        def wread(u):
            g, ks = u >> 2, u & 3
            assert g <= cert["landed"], (g, cert)
            off = (g % NSL) * 8192 + ks * 2048
            hi = 2 if off >= 65536 else 0
            off &= 0xffff
            b_ = WFr + 8 * (u & 3)
            return [f"ds_read_b64_tr_b16 {vr(b_ + 4*b + 2*h, 2)}, v{PW[hi + b]} offset:{off + h*1024}" for b in range(2) for h in range(2)]
        def own_landed():
            w = [g for kind, g in PQ if kind == "w"]
            return (min(w) if w else cert["wnext"]) - 1
        def more_w(n):
            for _ in range(n):
                g = cert["wnext"]
                if g < 32 and g - NSL <= cert["free"]:
                    wdma(g); cert["wnext"] += 1
        PDEP = OPT["pdepth"]
        a("s_setprio 0")
        more_w(OPT["winit"])
        for part in range(2):
            a("s_mov_b32 s56, 0")
            if part == 1:
                a(f"""
                s_add_u32 s58, s58, 2048
                s_add_u32 s39, s39, {4*MB}
                s_add_u32 s49, s49, 131072
                s_setprio 0
                s_mov_b32 s100, {SPIN_MAX * 16}
                L_yp_wx:
                ds_read_b32 v{VCNT}, v{PE+5}
                s_waitcnt lgkmcnt(0)
                v_cmp_le_u32 vcc, 6, v{VCNT}
                s_cbranch_vccnz L_yp_go0
                s_sleep 8
                s_sub_u32 s100, s100, 1
                s_cbranch_scc0 L_yp_wx
                L_yp_go0:
                s_sleep {OPT['pdelay']}
                """)
            if STAMP: a(f"s_mov_b32 s43, {part}")
            st.dyn("s43", 3, 26)
            for g in range(16 * part, 16 * part + PDEP):
                for op in oload(g): a(op); PQ.append(("o", g))
            a(f"s_setprio {OPT['yprio']}")
            for r in range(32): a(f"v_mov_b32 v{ACC+r}, 0")
            n_o = 4 * PDEP
            a(f"s_waitcnt vmcnt({n_o})"); del PQ[:-n_o]
            group_sync(f"p1{part}", 4, 1)
            cert.update(landed=own_landed(), free=16 * part - 1, pend=None)
            a(f"s_setprio {PR}")
            st.dyn("s43", 3, 27)
            LQ = []
            u0 = 64 * part
            for u in range(u0, u0 + 2):
                for op in wread(u): a(op); LQ.append(u)
            for u in range(u0, u0 + 64):
                g, ks = u >> 2, u & 3
                if ks == 0:
                    k = max(i for i, x in enumerate(PQ) if x == ("o", g))
                    a(f"s_waitcnt vmcnt({len(PQ) - 1 - k})"); del PQ[:k + 1]
                    pend = oload(g + PDEP) if (g & 15) + PDEP < 16 else []
                k = max(i for i, x in enumerate(LQ) if x == u)
                a(f"s_waitcnt lgkmcnt({len(LQ) - 1 - k})"); del LQ[:k + 1]
                sync_here = ks == 0 and g % 2 == 1 and (cert["landed"] < 31)
                if sync_here and cert["pend"]:
                    a(f"v_cmp_gt_u32 vcc, s48, v{VCNT}\ns_cbranch_vccnz L_yps_{g}\nL_ypsd_{g}:")
                    ool.append(lambda g=g: (a(f"L_yps_{g}:"), spin_lds(f"pq{g}"), a(f"s_branch L_ypsd_{g}")))
                    cert.update(landed=cert["pend"][0], free=cert["pend"][1], pend=None)
                if sync_here and (g & 15) < 15:
                    for op in arrive(4): a(op)
                    LQ.append(-1)
                    cert["pend"] = (own_landed(), g - 1)
                rd_ = wread(u + 2) if u + 2 < u0 + 64 else []
                for b in range(2):
                    a(mfma(ACC + 16 * b, WFr + 8 * (u & 3) + 4 * b, OFr + 16 * (g % 8) + 4 * ks))
                    for op in rd_[2 * b:2 * b + 2]: a(op); LQ.append(u + 2)
                    if b == 0 and pend:
                        vm(pend.pop(0)); PQ.append(("o", g + PDEP))
                if ks == 1 and g % 2 == 0 and cert["pend"]: a(RDCNT); LQ.append(-1)
                if ks in (1, 3): more_w(1)
            a("s_mov_b32 s50, s58\ns_nop 9")
            for b in range(2):
                d = ACC + 16 * b
                for r in range(8): a(f"v_cvt_pk_bf16_f32 v{d+r}, v{d+2*r}, v{d+2*r+1}")
                a(f"ds_write_b128 v{PE+2*b}, {vr(d,4)}\nds_write_b128 v{PE+2*b+1}, {vr(d+4,4)}")
            for i in range(4): a(f"ds_read_b128 {vr(WFr+4*i,4)}, v{PE+4} offset:{i*1024}")
            for i in range(4):
                a(f"s_waitcnt lgkmcnt({3-i})")
                a(f"buffer_store_dwordx4 {vr(WFr+4*i,4)}, v{PS}, s[8:11], s50 offen {OPT['p_sc']}")
                a("s_add_u32 s50, s50, 0x8000")
                PQ.append(("s", 0))
            st.dyn("s43", 3, 28)
            print("proj part", part, cert)
    if STAMP: a("s_waitcnt vmcnt(0)")
    st(1)
    st.flush(T0)
    a("s_endpgm")

    a("L_x:")
    if OPT["icp"]:
        a("""
        s_getpc_b64 s[4:5]
        L_pc0:
        s_sub_u32 s4, s4, L_pc0-fused_kernel
        s_subb_u32 s5, s5, 0
        s_mov_b32 s6, L_code_end-fused_kernel
        s_mov_b32 s7, 0x00020000
        s_and_b32 s44, s31, 1
        s_lshl_b32 s44, s44, 2
        s_add_u32 s44, s44, s16
        s_lshl_b32 s44, s44, 13
        """)
        a(f"v_lshlrev_b32 v{DT}, 7, v0\nbuffer_load_dword v{DT}, v{DT}, s[4:7], s44 offen")
    a(f"""
    v_lshlrev_b32 v{VFL}, 2, v0
    v_add_u32 v{VFL}, {FLAGS}, v{VFL}
    v_mov_b32 v2, 0
    ds_write_b32 v{VFL}, v2
    ds_write_b32 v{VFL}, v2 offset:256
    ds_write_b32 v{VFL}, v2 offset:512
    s_and_b32 s50, s59, 1
    s_lshl_b32 s50, s50, 8
    v_add_u32 v{VFL}, s50, v{VFL}
    s_waitcnt lgkmcnt(0)
    """)
    srd(a, 12, "s28", "s29", WS_SIZE)
    st(0)
    a(f"""
    s_or_b32 s50, s2, s16
    s_cmp_lg_u32 s50, 0
    s_cbranch_scc1 L_x_noent
    v_mov_b32 v8, {WS_GEN}
    s_mov_b64 exec, 1
    buffer_load_dwordx2 v[12:13], v8, s[12:15], 0 offen sc1
    v_mov_b32 v14, 1
    v_mov_b32 v15, 1
    v_mov_b32 v9, 0
    s_waitcnt vmcnt(0)
    v_add_u32 v12, 1, v12
    buffer_store_dwordx2 v[12:13], v8, s[12:15], 0 offen sc1
    s_waitcnt vmcnt(0)
    global_store_dwordx4 v9, v[12:15], s[18:19] sc1
    s_mov_b64 exec, -1
    L_x_noent:
    s_and_b32 s35, s33, 7
    s_lshl_b32 s35, s35, 1
    s_lshr_b32 s50, s33, 3
    s_or_b32 s35, s35, s50
    """)
    if OPT["pret"]:
        flag_base(1, "s35")
        a(f"v_mov_b32 v{DT+1}, s32\nbuffer_load_dword v{DT+1}, v{DT+1}, s[12:15], 0 offen")
        flag_base(0, "s33")
        a(f"v_mov_b32 v{DT+2}, s32\nbuffer_load_dword v{DT+2}, v{DT+2}, s[12:15], 0 offen")
    gemm_setup(0, 1, "s35")
    if OPT["pret"] and OPT["fuse"]:
        for kind in (2, 3):
            oflag_base(kind)
            a(f"v_mov_b32 v{DT+1+kind}, s32\nbuffer_load_dword v{DT+1+kind}, v{DT+1+kind}, s[12:15], 0 offen")
    a(f"""
    s_mov_b32 s31, {G2_SLOT}
    s_mov_b32 s45, 0
    s_barrier
    """)
    st(1)
    first_frags()
    def xmisc(endcmp=None):
        M = {25 + i: ops for i, ops in enumerate(ROT)}
        M[31] = ["s_waitcnt lgkmcnt(0)"]; M[BAR] = ["s_barrier"]
        if endcmp: M[30] = [endcmp]
        return M
    a(".p2align 6\nL_x_loopB:")
    stage(xmisc()); stage(xmisc("s_cmp_lt_u32 s17, 16"))
    a("s_cbranch_scc1 L_x_loopB")
    st(2)
    a(f"s_setprio {OPT['xprio']}")
    a(NONCE_LD)
    a(f"""
    s_mul_i32 s43, s37, 19456
    s_add_u32 s43, s43, {XSCR}
    s_lshl_b32 s39, s36, 12
    s_add_u32 s40, s43, s39
    s_add_u32 s41, s40, 8192
    s_xor_b32 s39, s39, 4096
    s_add_u32 s39, s43, s39
    """)
    relayout("s40", "s41", 0, QQ[0], 2)
    for op in arrive(2): a(op)
    a(f"v_add_u32 v16, s39, v{VLANE}")
    get_nonce("x")
    flag_base(1, "s35")
    attn_consts(False)
    for r in range(64): a(f"v_mov_b32 v{OO[0]+r}, 0")
    a(f"""
    s_lshl_b32 s50, s35, 14
    s_sub_u32 s38, s65, s50
    s_lshl_b32 s56, 1, s35
    s_lshl_b32 s42, s33, 2
    s_lshl_b32 s50, s36, 1
    s_add_u32 s42, s42, s50
    s_lshl_b32 s42, s42, 5
    s_lshl_b32 s50, s34, 1
    s_add_u32 s42, s42, s50
    s_add_u32 s42, s42, s37
    s_lshl_b32 s42, s42, 11
    s_add_u32 s42, s42, {WS_O + 4*MB}    ; O offset
    """)
    spin_lds("x1")
    for k in range(4): a(f"ds_read_b128 {vr(QQ[2]+4*k,4)}, v16 offset:{k*1024}")
    st(3)
    def FR(f): return F0 + 4 * (f % NR)
    for pz in range(2):
        if pz == 1:
            a("s_waitcnt lgkmcnt(0)")
            for op in arrive(2): a(op)
            for r in list(range(12, 16)) + list(range(248, 256)): a(f"v_mov_b32 v{r}, 0")
        for z in range(2):
            j = (3, 2, 1, 0)[2 * pz + z] if False else (1, 0, 3, 2)[2 * pz + z]
            sj = S[j & 1]
            a(mfma(sj, FR(0), QQ[j], "0")); a(mfma(sj, FR(1), QQ[j] + 4))
        a("s_nop 10")
        for z in range(2):
            j = (1, 0, 3, 2)[2 * pz + z]
            rowmax_negm(S[j & 1], NN[j])
    VQ = []
    def vtile(i, j, loads=True, first=False, do_qk=True, chk=None, side=None):
        side = side or {}
        v = 4 * i + j
        s, sp = S[v & 1], S[(v + 1) & 1]
        jb, ib = (j - 1) & 3, (i if j else i - 1)
        jn, in_ = (j + 1) & 3, (i if j < 3 else i + 1)
        e = [f"v_exp_f32 v{s+r}, v{s+r}" for r in range(16)]
        def needf(f):
            fm = f % PER
            if fm in VQ:
                k = VQ.index(fm)
                a(f"s_waitcnt vmcnt({len(VQ) - 1 - k})"); del VQ[:k + 1]
                return True
            return False
        def freef(f):
            if not loads: return False
            g = f + NR
            a(f"buffer_load_dwordx4 {vr(FR(f),4)}, v{VLANE}, s[12:15], s60 offen offset:{(g & 3)*1024} {HL}")
            VQ.append(g % PER)
            return True
        def sd(k, did=True):
            for op in side.get(k, []): a(op); did = True
            if not did: a("s_nop 0")
        a(e[0]); a(e[1])
        if not first: a(sm32(OO[jb], FR(4 * ib + 3), sp + 8))
        sd(0)
        if j == 0 and not first: freef(4 * ib + 3)
        a(e[2]); a(e[3]); a(e[4])
        if not first: a(sm16(LL[jb], AS, sp + 8))
        needf(4 * in_); sd(1)
        a(e[5])
        if do_qk: a(mfma(sp, FR(4 * in_), QQ[jn], NN[jn]))
        needf(4 * in_ + 1); sd(2)
        if j == 2: freef(4 * i)
        a(e[6]); a(e[7]); a(e[8])
        if do_qk: a(mfma(sp, FR(4 * in_ + 1), QQ[jn] + 4))
        d = needf(4 * i + 2)
        if j == 2: d = freef(4 * i + 1) or d
        sd(3, d)
        a(e[9]); a(e[10]); a(e[11])
        a(sm32(OO[j], FR(4 * i + 2), s))
        d = freef(4 * i + 2) if j == 3 else False
        sd(4, d)
        a(e[12]); a(e[13])
        if chk: a(f"v_max3_f32 v{T0}, v{LL[0]}, v{LL[1]}, v{LL[2]}\nv_max_f32 v{T0}, v{T0}, v{LL[3]}\nv_cmp_lt_f32 vcc, s46, v{T0}")
        a(e[14])
        a(sm16(LL[j], AS, s))
        d = needf(4 * i + 3)
        if chk:
            a(f"s_cbranch_vccnz L_resc_{chk}\nL_back_{chk}:"); xres.append(chk); d = True
        sd(5, d)
        a(e[15])
    xres = []
    TPB = NR // 4 if NR % 4 == 0 else NR // 2
    TPB = max(TPB, 2)
    PER = 4 * TPB * 1000
    def start_pipe():
        a(mfma(S[0], FR(0), QQ[0], NN[0])); a(mfma(S[0], FR(1), QQ[0] + 4))
    def drain_pipe(i):
        a(f"s_nop 1\n{sm32(OO[3], FR(4 * i + 3), S[1] + 8)}\n{sm16(LL[3], AS, S[1] + 8)}")
    def pub():
        a("s_waitcnt vmcnt(0)")
        publish()
        a("s_setprio 0")
        st(4)
    a("s_nop 1"); start_pipe()
    if OPT["epub"]: pub()
    a("s_nop 12")
    for j in range(4): vtile(0, j, loads=False, first=(j == 0))
    if not OPT["epub"]: pub()
    for j in range(4): vtile(1, j, loads=False, do_qk=(j < 3), chk=None)
    drain_pipe(1)
    def tile_ptr(tag):
        return [["s_lshr_b32 s50, s44, 1"], ["s_add_u32 s50, s50, s35"], ["s_and_b32 s50, s50, 15"],
                ["s_bitcmp1_b32 s56, s50"], [f"s_cbranch_scc0 L_xw_{tag}", f"L_xwd_{tag}:"], ["s_lshl_b32 s50, s50, 14"],
                ["s_add_u32 s61, s38, s50"], ["s_and_b32 s50, s44, 1"], ["s_lshl_b32 s50, s50, 12"],
                ["s_add_u32 s44, s44, 1"], ["s_add_u32 s60, s61, s50"]]
    def wait_site(tag):
        def o():
            a(f"L_xw_{tag}:\ns_lshl_b32 s51, 1, s50")
            poll("x" + tag, "s51", OPT["xsleep"])
            a(f"s_branch L_xwd_{tag}")
        ool.append(o)
    a("s_mov_b32 s44, 2\ns_mov_b32 s45, 0")
    for f in range(NR - 1):
        if f % 4 == 0:
            for ops in tile_ptr(f"p{f}"):
                for op in ops: a(op)
            wait_site(f"p{f}")
        a(f"buffer_load_dwordx4 {vr(FR(f),4)}, v{VLANE}, s[12:15], s60 offen offset:{(f & 3)*1024} {HL}")
    for r in range(4): a(f"v_mov_b32 v{FR(NR-1)+r}, 0")
    for r in range(8): a(f"v_mov_b32 v{S[1]+8+r}, 0")
    a(f"s_waitcnt vmcnt({NR-3})")
    start_pipe()
    st(5)
    a("s_nop 12")
    PER = 4 * TPB
    assert PER % NR == 0 and 30 % TPB == 0
    PER = 2 * PER
    def body(base):
        for t in range(TPB):
            i = base + t
            sides = {j: {} for j in range(4)}
            frees = [(0, 0, 4 * (i - 1) + 3), (2, 2, 4 * i), (2, 3, 4 * i + 1), (3, 4, 4 * i + 2)]
            nxt = [(jj, k, f) for (jj, k, f) in frees if (f + NR) % 4 == 0][0]
            ops = tile_ptr(f"b{t}")
            if NR == 8: slots = [(0, 1), (0, 2), (0, 4), (1, 0), (1, 1), (1, 2), (1, 3), (1, 4), (1, 5), (2, 0), (2, 1)]
            else: slots = [(0, 1), (0, 2), (0, 4), (1, 0), (1, 1), (1, 2), (1, 3), (1, 4), (1, 5), (2, 0), (2, 5)]
            assert nxt[:2] == ((2, 2) if NR == 8 else (3, 4))
            if base == 0: wait_site(f"b{t}")
            for (jj, k), op in zip(slots, ops): sides[jj][k] = op
            if t == TPB - 1:
                sides[3][0] = ["s_add_u32 s45, s45, 1"]; sides[3][3] = [f"s_cmp_lt_u32 s45, {30 // TPB}"]
            for j in range(4): vtile(i, j, chk=(f"x{t}" if (j == 3 and t % 2 == 1) else None), side=sides[j])
    VQ[:] = list(range(2, NR - 1))
    a(".p2align 6\nL_x_loop:")
    body(0)
    assert VQ == [(f + PER // 2) % PER for f in range(2, NR - 1)], VQ
    a("s_cbranch_scc1 L_x_loop")
    st(6)
    drain_pipe(TPB - 1)
    VFL, VONE = 30, 31
    a(f"""
    s_setprio {OPT['xprio']}
    s_lshl_b32 s50, s37, 8
    s_add_u32 s50, s50, {FLAGS}
    v_lshrrev_b32 v{VFL}, 2, v{VLANE}
    v_add_u32 v{VFL}, s50, v{VFL}
    v_mov_b32 v{VONE}, 1
    """)
    spin_lds("x1b")
    a(f"""
    s_mul_i32 s40, s36, 9216
    s_xor_b32 s41, s40, 9216
    s_add_u32 s40, s40, s43
    s_add_u32 s41, s41, s43
    v_add_u32 v16, s40, v{VLANE}
    v_add_u32 v17, s41, v{VLANE}
    v_mov_b32 v20, v{LL[2]}
    v_mov_b32 v21, v{NN[2]}
    v_mov_b32 v23, v{NN[3]}
    """)
    for k in range(4): a(f"ds_write_b128 v16, {vr(OO[2]+4*k,4)} offset:{k*1024}")
    a(f"s_nop 1\nv_mov_b32 v22, v{LL[3]}")
    for k in range(4): a(f"ds_write_b128 v16, {vr(OO[3]+4*k,4)} offset:{4096+k*1024}")
    a("ds_write_b128 v16, v[20:23] offset:8192")
    group_sync("x2", 2)
    a("ds_read_b128 v[20:23], v17 offset:8192")
    for k in range(8): a(f"ds_read_b128 {vr(NN[1]+16+4*k-16 if False else (OO[2]+4*k),4)}, v17 offset:{k*1024}")
    a("s_waitcnt lgkmcnt(8)")
    for j in range(2):
        l2, n2, g1, g2 = 20 + 2 * j, 21 + 2 * j, 24 + 2 * j, 25 + 2 * j
        a(f"""
        v_frexp_exp_i32_f32 v28, v{LL[j]}
        v_frexp_exp_i32_f32 v29, v{l2}
        v_cvt_f32_i32 v28, v28
        v_cvt_f32_i32 v29, v29
        v_sub_f32 v28, v28, v{NN[j]}
        v_sub_f32 v29, v29, v{n2}
        v_max_f32 v28, v28, v29
        v_add_f32 v{g1}, v{NN[j]}, v28
        v_add_f32 v{g2}, v{n2}, v28
        v_exp_f32 v{g1}, -v{g1}
        v_exp_f32 v{g2}, -v{g2}
        s_nop 0
        v_mul_f32 v{LL[j]}, v{g1}, v{LL[j]}
        v_fma_f32 v{LL[j]}, v{g2}, v{l2}, v{LL[j]}
        v_rcp_f32 v28, v{LL[j]}
        v_mul_f32 v{18+j}, 0, v{LL[j]}
        v_mul_f32 v{g1}, v28, v{g1}
        v_mul_f32 v{g2}, v28, v{g2}
        """)
        for r in range(16): a(f"v_mul_f32 v{OO[j]+r}, v{g1}, v{OO[j]+r}")
    a("s_lshl_b32 s50, s36, 13\ns_sub_u32 s38, s38, s50")
    a("s_waitcnt lgkmcnt(0)")
    for j in range(2):
        for r in range(16): a(f"v_fma_f32 v{OO[j]+r}, v{25+2*j}, v{OO[2+j]+r}, v{OO[j]+r}")
    for j in range(2):
        for r in range(16): a(f"v_fma_f32 v{18+j}, v{OO[j]+r}, 0, v{18+j}")
    a("v_cmp_u_f32 s[60:61], v18, v18\nv_cmp_u_f32 s[64:65], v19, v19\ns_nop 3")
    for j in range(2):
        pk = NN[2] + 8 * j
        a(f"s_cmp_lg_u64 {('s[60:61]', 's[64:65]')[j]}, 0\ns_cbranch_scc1 L_xslow{j}\nL_xslowd{j}:")
        def o(j=j):
            a(f"L_xslow{j}:\ns_mov_b32 s54, s38\ns_mov_b32 s55, 64\ns_mov_b32 s57, 0")
            for r in range(8): a(f"v_mov_b32 v{QF+r}, v{QQ[j]+r}")
            a(f"s_call_b64 s[52:53], L_slow\nv_rcp_f32 v{T1}, v{L}\ns_nop 0")
            for r in range(16): a(f"v_mul_f32 v{OO[j]+r}, v{T1}, v{O+r}")
            a(f"s_branch L_xslowd{j}")
        ool.append(o)
        for r in range(8): a(f"v_cvt_pk_bf16_f32 v{pk+r}, v{OO[j]+2*r}, v{OO[j]+2*r+1}")
        a(f"""
        buffer_store_dwordx4 {vr(pk,4)}, v{VLANE}, s[12:15], s42 offen {ASC}
        buffer_store_dwordx4 {vr(pk+4,4)}, v{VLANE}, s[12:15], s42 offen offset:1024 {ASC}
        """)
        if j == 0: a(f"s_add_u32 s42, s42, {32*2048}")
    if OPT["fuse"]:
        oflag_base(3)
        a("s_waitcnt vmcnt(0)")
        publish()
    if STAMP: a("s_waitcnt vmcnt(0)")
    st(7)
    st.flush(T0)
    a("L_f_end:\ns_endpgm")
    VFL, VONE = 254, 255
    for o in ool: o()
    for i in inval_sites:
        a(f"L_a_inv{i}:\ns_nop 7")
        for r in range(16): a(f"v_mov_b32 v{NM+r}, v{T2}")
        a(f"s_nop 1\ns_branch L_a_val{i}")
    def rescale(o, l, nm):
        a(f"""
        v_frexp_exp_i32_f32 v{T0}, v{l}
        v_add_u32 v{T0}, {int(R_OFF)}, v{T0}     ; delta
        v_cvt_f32_i32 v{T1}, v{T0}
        v_sub_u32 v{T0}, 0, v{T0}
        """)
        for r in range(16): a(f"v_ldexp_f32 v{o+r}, v{o+r}, v{T0}")
        a(f"v_ldexp_f32 v{l}, v{l}, v{T0}")
        for r in range(16): a(f"v_sub_f32 v{nm+r}, v{nm+r}, v{T1}")
    def scale_p(s):
        for r in range(8, 15): a(f"v_ldexp_f32 v{s+r}, v{s+r}, v{T0}")
        a(f"v_sub_f32 v{s+15}, v{s+15}, v{T1}")
    def shift_s(s):
        for r in range(16): a(f"v_sub_f32 v{s+r}, v{s+r}, v{T1}")
    for par, tag in rescue_sites:
        a(f"L_resc_{tag}:\ns_nop 15")
        rescale(O, L, NM); scale_p(S[par]); shift_s(S[par ^ 1])
        a(f"s_nop 1\ns_branch L_back_{tag}")
    for tag in xres:
        a(f"L_resc_{tag}:\ns_call_b64 s[52:53], L_rescx\ns_branch L_back_{tag}")
    a("L_rescx:\ns_nop 15")
    for j in range(4):
        rescale(OO[j], LL[j], NN[j])
        if j == 0: shift_s(S[0])
        if j == 3: scale_p(S[1])
    a("s_nop 1\ns_setpc_b64 s[52:53]")
    s = S[0]; M = S[1]; AL = S[1] + 1
    a(f"L_slow:\ns_waitcnt vmcnt(0)\ns_nop 15\nv_mov_b32 v{M}, 0xff7fffff\ns_mov_b32 s50, 0")
    zero_acc()
    a("L_slow_loop:")
    for k in range(4): a(f"buffer_load_dwordx4 {vr(F0+4*k,4)}, v{VLANE}, s[12:15], s54 offen offset:{k*1024} {HL}")
    a(f"""
    s_waitcnt vmcnt(0)
    {mfma(s, KF, QF, "0")}
    {mfma(s, KF+4, QF+4)}
    s_nop 15
    s_cmp_eq_u32 s57, 1
    s_cbranch_scc0 L_slow_nm1
    s_cmp_eq_u32 s50, 0
    s_cbranch_scc0 L_slow_nm1
    """)
    for r in range(16): a(f"v_cndmask_b32 v{s+r}, v{T2}, v{s+r}, {sr(64+2*r,2)}")
    a(f"""
    L_slow_nm1:
    s_add_u32 s50, s50, 1
    s_cmp_eq_u32 s57, 0
    s_cbranch_scc1 L_slow_nm2
    s_cmp_eq_u32 s50, s55
    s_cbranch_scc0 L_slow_nm2
    """)
    for r in range(16): a(f"v_cndmask_b32 v{s+r}, v{s+r}, v{T2}, {sr(64+2*r,2)}")
    a("L_slow_nm2:")
    a(f"v_max3_f32 v{T0}, v{s}, v{s+1}, v{M}")
    for r in range(2, 16, 2): a(f"v_max3_f32 v{T0}, v{T0}, v{s+r}, v{s+r+1}")
    a(f"""
    v_mov_b32 v{T1}, v{T0}
    s_nop 1
    v_permlane32_swap_b32 v{T0}, v{T1}
    s_nop 1
    v_max_f32 v{T0}, v{T0}, v{T1}
    v_sub_f32 v{AL}, v{M}, v{T0}
    v_exp_f32 v{AL}, v{AL}
    v_mov_b32 v{M}, v{T0}
    """)
    for r in range(16): a(f"v_sub_f32 v{s+r}, v{s+r}, v{M}")
    for r in range(16): a(f"v_exp_f32 v{s+r}, v{s+r}")
    for r in range(16): a(f"v_mul_f32 v{O+r}, v{AL}, v{O+r}")
    a(f"""
    v_mul_f32 v{L}, v{AL}, v{L}
    s_nop 3
    {sm32(O, VA, s)}
    {sm32(O, VB, s+8)}
    {sm16(L, AS, s)}
    {sm16(L, AS, s+8)}
    s_nop 15
    s_add_u32 s54, s54, 4096
    s_cmp_lt_u32 s50, s55
    s_cbranch_scc1 L_slow_loop
    s_setpc_b64 s[52:53]
    """)
    return kdesc(K, 256)

PJ_NB = 4
PJ_LDS = PJ_NB * 32768

def gen_proj(a):
    K = "proj_kernel"
    kstart(a, K)
    a("""
    s_cmp_ge_u32 s2, 256
    s_cbranch_scc1 L_p_end
    s_load_dwordx2 s[20:21], s[0:1], 16
    s_load_dwordx2 s[22:23], s[0:1], 40
    s_load_dwordx2 s[24:25], s[0:1], 48
    s_load_dwordx2 s[28:29], s[0:1], 64
    v_lshrrev_b32 v1, 6, v0
    v_and_b32 v0, 63, v0
    s_and_b32 s30, s2, 7
    s_lshr_b32 s31, s2, 3
    v_readfirstlane_b32 s16, v1
    s_lshr_b32 s32, s30, 2        ; part
    s_and_b32 s33, s30, 3
    s_lshl_b32 s33, s33, 2
    s_and_b32 s34, s31, 3
    s_add_u32 s33, s33, s34       ; mt (0..15)
    s_lshr_b32 s34, s31, 2        ; nt (0..7)
    s_waitcnt lgkmcnt(0)
    s_cmp_eq_u32 s32, 0
    s_cselect_b32 s20, s20, s22
    s_cselect_b32 s21, s21, s23
    """)
    srd(a, 4, "s20", "s21", 1024 * 1024 * 2)
    srd(a, 8, "s24", "s25", 2048 * 2048 * 2)
    srd(a, 12, "s28", "s29", WS_SIZE)
    a("""
    s_cmp_ge_u32 s16, 4
    s_cbranch_scc1 L_p_loader
    """)
    a("""
    s_lshr_b32 s36, s16, 1
    s_and_b32 s37, s16, 1
    v_lshlrev_b32 v1, 4, v0
    s_lshl_b32 s38, s36, 13
    v_add_u32 v1, s38, v1
    v_lshrrev_b32 v7, 5, v0       ; h
    v_bfe_u32 v6, v0, 2, 2        ; r = i>>2
    v_lshl_add_u32 v5, v7, 2, v6  ; row = 4h + r
    v_lshlrev_b32 v5, 8, v5       ; *256
    v_and_b32 v4, 1, v0           ; h' = c&1
    v_lshlrev_b32 v4, 2, v4       ; 4h'
    v_bfe_u32 v7, v0, 4, 1        ; G  (g>>1)
    v_or_b32 v4, v4, v7
    s_lshl_b32 s38, s37, 3
    v_or_b32 v4, s38, v4          ; u for b=0
    v_and_b32 v7, 1, v6
    v_lshlrev_b32 v7, 1, v7
    v_xor_b32 v4, v4, v7
    v_lshrrev_b32 v7, 1, v6
    v_lshlrev_b32 v7, 3, v7
    v_xor_b32 v4, v4, v7
    v_bfe_u32 v7, v0, 1, 1        ; g&1
    v_lshl_add_u32 v5, v7, 3, v5
    v_add_u32 v5, 16384, v5
    v_lshl_add_u32 v2, v4, 4, v5
    v_xor_b32 v4, 2, v4
    v_lshl_add_u32 v3, v4, 4, v5
    """)
    ACC = 72
    st = Stamper(a, 6, 1)
    st(0)
    for r in range(ACC, ACC + 64): a(f"v_mov_b32 v{r}, 0")
    F = [8, 40]
    def reads(fs, u):
        r = []
        for kk in range(2):
            ks = 2 * u + kk
            b = F[fs] + 16 * kk
            r.append(f"ds_read_b128 {vr(b,4)}, v1 offset:{ks*1024}")
            r.append(f"ds_read_b64_tr_b16 {vr(b+8,2)}, v2 offset:{ks*4096}")
            r.append(f"ds_read_b64_tr_b16 {vr(b+10,2)}, v2 offset:{ks*4096+2048}")
            r.append(f"ds_read_b64_tr_b16 {vr(b+12,2)}, v3 offset:{ks*4096}")
            r.append(f"ds_read_b64_tr_b16 {vr(b+14,2)}, v3 offset:{ks*4096+2048}")
            r.append(f"ds_read_b128 {vr(b+4,4)}, v1 offset:{4096+ks*1024}")
        return r
    def mfmas(fs):
        m = []
        for kk in range(2):
            b = F[fs] + 16 * kk
            for tt in range(2):
                for bb in range(2):
                    m.append(mfma(ACC + (tt * 2 + bb) * 16, b + 8 + 4 * bb, b + 4 * tt))
        return m
    a("s_mov_b32 s40, 0\ns_mov_b32 s49, 0x8000\ns_barrier")
    st(1)
    for r in reads(0, 0): a(r)
    a(".p2align 6\nL_p_loop:")
    for u in range(2):
        rd = reads(u ^ 1, u ^ 1); mm = mfmas(u)
        a("s_waitcnt lgkmcnt(0)")
        if u == 1:
            a("s_barrier")
            a(mm[0])
            a(f"""
            s_add_u32 s40, s40, 1
            s_and_b32 s41, s40, {PJ_NB-1}
            s_cmp_eq_u32 s41, 0
            s_cselect_b32 s43, {(-(PJ_NB-1)*32768) & 0xffffffff:#x}, s49
            v_add_u32 v1, s43, v1
            v_add_u32 v2, s43, v2
            v_add_u32 v3, s43, v3
            """)
        else:
            a(mm[0])
        a(rd[0]); a(rd[1]); a(rd[2])
        for i in range(1, 8):
            a(mm[i])
            if i < 4:
                a(rd[3 * i]); a(rd[3 * i + 1]); a(rd[3 * i + 2])
    a("s_cmp_lt_u32 s40, 16\ns_cbranch_scc1 L_p_loop")
    st(2)
    SC = OPT["p_sc"]
    a("""
    s_waitcnt lgkmcnt(0)
    s_lshl_b32 s46, s16, 13
    v_and_b32 v1, 31, v0          ; t
    v_lshrrev_b32 v2, 5, v0       ; h'
    v_lshlrev_b32 v2, 2, v2
    v_and_b32 v3, 7, v0
    v_xor_b32 v2, v2, v3          ; (4h') ^ (t&7)
    v_lshlrev_b32 v1, 7, v1
    v_add_u32 v1, s46, v1
    v_lshl_add_u32 v8, v2, 4, v1
    v_xor_b32 v9, 16, v8
    v_xor_b32 v10, 32, v8
    v_xor_b32 v11, 48, v8
    v_lshlrev_b32 v12, 4, v0
    v_add_u32 v12, s46, v12
    s_lshl_b32 s44, s33, 7
    s_lshl_b32 s45, s36, 6
    s_add_u32 s44, s44, s45
    v_lshrrev_b32 v1, 3, v0
    v_xor_b32 v2, v1, v3          ; unit
    v_add_u32 v1, s44, v1
    v_lshlrev_b32 v1, 12, v1
    v_lshl_add_u32 v1, v2, 4, v1
    s_lshl_b32 s44, s32, 11
    s_lshl_b32 s45, s34, 8
    s_add_u32 s44, s44, s45
    s_lshl_b32 s45, s37, 7
    s_add_u32 s44, s44, s45
    """)
    for tt in range(2):
        for bb in range(2):
            d = ACC + (tt * 2 + bb) * 16
            for r in range(8): a(f"v_cvt_pk_bf16_f32 v{d+r}, v{d+2*r}, v{d+2*r+1}")
            a(f"ds_write_b128 v{8+2*bb}, {vr(d,4)} offset:{tt*4096}")
            a(f"ds_write_b128 v{9+2*bb}, {vr(d+4,4)} offset:{tt*4096}")
        a("s_waitcnt lgkmcnt(0)")
        for i in range(4): a(f"ds_read_b128 {vr(16+16*tt+4*i,4)}, v12 offset:{tt*4096+i*1024}")
    for i in range(8):
        a(f"s_waitcnt lgkmcnt({max(0, 7-i) if i >= 4 else 4})")
        a(f"buffer_store_dwordx4 {vr(16+4*i,4)}, v1, s[8:11], s44 offen {SC}")
        a("s_add_u32 s44, s44, 0x8000")
    st(3)
    if STAMP: a("s_waitcnt vmcnt(0)")
    st(4)
    st.flush(1)
    a("s_endpgm")
    a("L_p_loader:")
    a(f"""
    s_sub_u32 s36, s16, 4
    s_lshl_b32 s37, s33, 2
    s_add_u32 s37, s37, s36
    s_lshl_b32 s37, s37, 16
    s_lshl_b32 s38, s32, 22
    s_add_u32 s37, s37, s38
    s_add_u32 s37, s37, {WS_O}
    v_lshlrev_b32 v1, 4, v0
    v_add_u32 v1, s37, v1         ; O voffset
    v_lshrrev_b32 v2, 4, v0       ; r
    v_and_b32 v3, 15, v0          ; p
    v_and_b32 v4, 1, v2
    v_lshlrev_b32 v4, 1, v4
    v_xor_b32 v3, v3, v4
    v_lshrrev_b32 v4, 1, v2
    v_lshlrev_b32 v4, 3, v4
    v_xor_b32 v3, v3, v4          ; u
    s_lshl_b32 s38, s36, 4
    v_add_u32 v2, s38, v2
    v_lshlrev_b32 v2, 11, v2      ; row*2048
    v_lshl_add_u32 v2, v3, 4, v2
    s_lshl_b32 s38, s34, 8
    v_add_u32 v2, s38, v2
    s_lshl_b32 s40, s36, 12       ; lw*4096
    """)
    for j in range(4): a(f"v_add_u32 v{8+j}, {j*4*2048 - j*1024}, v2")
    def ld(s):
        base = (s % PJ_NB) * 32768
        a(f"s_mov_b32 s42, {s*4096}\ns_mov_b32 s43, {s*64*2048}")
        a(f"s_add_u32 m0, s40, {base}\ns_nop 0")
        for j in range(4): a(f"buffer_load_dwordx4 v1, s[12:15], s42 offen offset:{j*1024} lds")
        a(f"s_add_u32 m0, s40, {base+16384}\ns_nop 0")
        for j in range(4): a(f"buffer_load_dwordx4 v{8+j}, s[4:7], s43 offen offset:{j*1024} lds")
    for s in range(OPT["p_pro"]): ld(s)
    issued = OPT["p_pro"]
    for s in range(16):
        a(f"s_waitcnt vmcnt({(issued - 1 - s) * 8})\ns_barrier")
        if issued < 16 and issued <= s + PJ_NB - 1:
            ld(issued); issued += 1
    a("L_p_end:\ns_endpgm")
    return kdesc(K, 136)

def main():
    global STAMP
    if "--stamp" in sys.argv:
        STAMP = True; sys.argv.remove("--stamp")
    for arg in list(sys.argv[1:]):
        if "=" in arg:
            k, v = arg.split("=", 1); OPT[k] = type(OPT[k])(v.replace("+", " ")); sys.argv.remove(arg)
    a = Asm()
    hdr = open("cdna_kernels/%s.s.ref" % NAME).read().split("\n")
    head = [l for l in hdr if l.startswith(";") and "@launch" not in l and "Override" not in l and "grid=ceil" not in l]
    txt = "\n".join(head) + "\n"
    txt += f"; @launch kernel=fused_kernel grid=(256,1,1) block=(512,1,1) lds={G2_LDS}\n"
    if not OPT["fuse"]: txt += f"; @launch kernel=proj_kernel grid=(256,1,1) block=(512,1,1) lds={PJ_LDS}\n"
    txt += '.amdgcn_target "amdgcn-amd-amdhsa--gfx950"\n.text\n'
    d = [gen_fused(a)] + ([] if OPT["fuse"] else [gen_proj(a)])
    a("L_code_end:")
    txt += a.text()
    txt += '.section .rodata,"a"\n' + "".join(d)
    out = sys.argv[1] if len(sys.argv) > 1 else OUT
    open(out, "w").write(txt)
    print("wrote", out, len(txt))

if __name__ == "__main__":
    main()
```
